```python
import torch

def _softmax(x, axis=-1):
    return torch.softmax(x, dim=axis)
def _gelu(x):
    return torch.nn.functional.gelu(x, approximate="tanh")
def _silu(x):
    return torch.nn.functional.silu(x)
def _sigmoid(x):
    return torch.sigmoid(x)
def _layernorm(x, axis=-1, eps=1e-5):
    m = x.mean(dim=axis, keepdim=True)
    v = x.var(dim=axis, keepdim=True, unbiased=False)
    return (x - m) / torch.sqrt(v + eps)
def _scatter_add(tgt, idx, src, axis=0):
    return tgt.clone().index_add_(axis, idx, src)
def _segment_sum(src, seg, n):
    out = torch.zeros((n,) + src.shape[1:], dtype=src.dtype)
    return out.index_add_(0, seg, src)
def _pad(x, pw):
    flat = tuple(v for pair in reversed(pw) for v in pair)
    return torch.nn.functional.pad(x, flat)

kernel_name = 'recurrent_scan__sliding_local_dilated__swiglu_ffn__prompt'

def setup_inputs():

    _w = (lambda a: (lambda t: t.to(torch.bfloat16) if t.is_floating_point() else t)(torch.as_tensor(a)))
    def _A_setup():
        B, S, D = 1, 2048, 512
        return {
            "x": _w((lambda *s: torch.randn(*s, dtype=torch.bfloat16) * 0.05)(B, S, D)),
            "wqkv": _w((lambda *s: torch.randn(*s, dtype=torch.bfloat16) * 0.05)(D, 3 * D)),
            "wo": _w((lambda *s: torch.randn(*s, dtype=torch.bfloat16) * 0.05)(D, D)),
        }
    _A_in = _A_setup()

    def _B_setup():
        B, S, D, F = 1, 2048, 512, 1792
        return {
            "x": _w((lambda *s: torch.randn(*s, dtype=torch.bfloat16) * 0.05)(B, S, D)),
            "w_gate": _w((lambda *s: torch.randn(*s, dtype=torch.bfloat16) * 0.05)(D, F)),
            "w_up": _w((lambda *s: torch.randn(*s, dtype=torch.bfloat16) * 0.05)(D, F)),
            "w_down": _w((lambda *s: torch.randn(*s, dtype=torch.bfloat16) * 0.05)(F, D)),
        }
    _B_in = _B_setup()

    return {
        "A_x": _A_in["x"],
        "A_wqkv": _A_in["wqkv"],
        "A_wo": _A_in["wo"],
        "B_x": _B_in["x"],
        "B_w_gate": _B_in["w_gate"],
        "B_w_up": _B_in["w_up"],
        "B_w_down": _B_in["w_down"],
    }

def reference(A_x, A_wqkv, A_wo, B_x, B_w_gate, B_w_up, B_w_down):
    def _A_ref(x, wqkv, wo):
        B, S, D = x.shape
        H = 32; Dh = D // H
        W, dil = 8, 2
        qkv = (lambda x, *d: x.permute(*d))((x @ wqkv).reshape(B, S, 3, H, Dh), 2, 0, 3, 1, 4)
        q, k, v = qkv[0], qkv[1], qkv[2]
        scale = Dh ** -0.5
        pos = torch.arange(S)
        off = torch.arange(W) * dil
        idx = pos[:, None] - off[None, :]
        mask = idx >= 0
        idx_c = torch.where(mask, idx, 0).reshape(-1)
        kg = k[:, :, idx_c, :].reshape(B, H, S, W, Dh)
        vg = v[:, :, idx_c, :].reshape(B, H, S, W, Dh)
        logits = torch.einsum("bhsd,bhswd->bhsw", q, kg) * scale
        logits = torch.where(mask[None, None, :, :], logits, -1e9)
        attn = _softmax(logits, axis=-1)
        o = torch.einsum("bhsw,bhswd->bhsd", attn, vg)
        return (lambda x, *d: x.permute(*d))(o, 0, 2, 1, 3).reshape(B, S, D) @ wo

    def _B_ref(x, w_gate, w_up, w_down):
        g = _silu(x @ w_gate)
        u = x @ w_up
        return (g * u) @ w_down

    x = A_x
    xn = _layernorm(x, axis=-1)
    s = _A_ref(xn, A_wqkv, A_wo)
    g = _silu(_B_ref(xn, B_w_gate, B_w_up, B_w_down))
    return x + s * g
```

```python
import re

REG = re.compile(r'^(-|abs\()?([vas])(?:(\d+)|\[(\d+):(\d+)\])\)?$')

def regs(op):
    op = op.strip()
    if op in ('vcc',): return {('s', 106), ('s', 107)}
    if op == 'vcc_lo': return {('s', 106)}
    if op == 'vcc_hi': return {('s', 107)}
    if op == 'm0': return {('s', 124)}
    if op == 'exec': return {('s', 126), ('s', 127)}
    m = REG.match(op)
    if not m: return set()
    k = m.group(2)
    if m.group(3) is not None: return {(k, int(m.group(3)))}
    return {(k, i) for i in range(int(m.group(4)), int(m.group(5)) + 1)}

TRANS = ('v_exp_f32', 'v_log_f32', 'v_rcp_f32', 'v_rsq_f32', 'v_sqrt_f32', 'v_sin_f32', 'v_cos_f32')

class Ins:
    __slots__ = ('text', 'mn', 'ops', 'kind', 'dst', 'src', 'tag', 'passes', 'srcc', 'srcab', 'data')
    def __init__(self, text, tag=None):
        self.text = text; self.tag = tag
        t = text.split(';')[0].strip()
        p = t.split(None, 1)
        self.mn = mn = p[0]
        rest = p[1] if len(p) > 1 else ''
        ops = [o.strip() for o in rest.split(',')] if rest else []
        ops2 = []
        for o in ops:
            ops2.append(o.split()[0] if o.split() else o)
        self.ops = ops2
        R = [regs(o) for o in ops2]
        U = lambda l: set().union(*l) if l else set()
        self.passes = 0; self.srcc = set(); self.srcab = set(); self.data = set()
        lds = bool(re.search(r'\blds\b', rest)) or 'load_lds' in mn
        if mn.endswith(':') or mn.startswith('.'):
            self.kind = 'label'; self.dst = set(); self.src = set()
        elif mn.startswith('v_mfma') or mn.startswith('v_smfmac'):
            self.kind = 'mfma'; self.dst = R[0]
            self.passes = 8 if '32x32' in mn else 4
            if mn.startswith('v_smfmac'):
                self.srcc = R[0]; self.srcab = U(R[1:])
            else:
                self.srcc = R[3]; self.srcab = R[1] | R[2]
            self.src = self.srcc | self.srcab
        elif mn.startswith('v_'):
            self.kind = 'valu'
            if mn.startswith('v_permlane') or mn.startswith('v_swap'):
                self.dst = R[0] | R[1]; self.src = R[0] | R[1]
            elif mn.startswith(('v_fmac', 'v_dot2c', 'v_writelane')):
                self.dst = R[0]; self.src = U(R)
            elif mn.startswith(('v_add_co', 'v_addc_co', 'v_sub_co', 'v_subb_co', 'v_mad_u64')):
                self.dst = R[0] | R[1]; self.src = U(R[2:])
            else:
                self.dst = R[0]; self.src = U(R[1:])
        elif mn.startswith('ds_'):
            self.kind = 'ds'
            if 'read' in mn or 'permute' in mn or 'swizzle' in mn or '_rtn' in mn:
                self.dst = R[0]; self.src = U(R[1:])
            else:
                self.dst = set(); self.src = U(R)
        elif mn.startswith(('buffer_', 'global_')):
            self.kind = 'vmem'
            if mn in ('buffer_wbl2', 'buffer_inv'):
                self.dst = set(); self.src = set()
            elif lds:
                self.dst = set(); self.src = U(R) | {('s', 124)}
            elif 'load' in mn:
                self.dst = R[0]; self.src = U(R[1:])
            elif 'atomic' in mn and re.search(r'\bsc0\b', rest):
                self.dst = R[0]; self.src = U(R) if mn.startswith('buffer') else U(R[1:])
            else:
                self.dst = set(); self.src = U(R)
                if 'x4' in mn or 'x3' in mn:
                    self.data = R[0] if mn.startswith('buffer') else R[1]
        elif mn.startswith(('s_load', 's_buffer_load', 's_memtime', 's_memrealtime')):
            self.kind = 'smem'; self.dst = R[0]; self.src = U(R[1:])
        elif mn in ('s_waitcnt', 's_nop', 's_barrier', 's_endpgm', 's_setprio', 's_sleep') or mn.startswith(('s_cbranch', 's_branch')):
            self.kind = 'ctl'; self.dst = set(); self.src = set()
        elif mn.startswith(('s_cmp', 's_bitcmp')):
            self.kind = 'salu'; self.dst = set(); self.src = U(R)
        elif mn.startswith('s_'):
            self.kind = 'salu'; self.dst = R[0]; self.src = U(R[1:])
            if 'saveexec' in mn: self.dst |= regs('exec')
            if mn.startswith(('s_addk', 's_mulk')): self.src |= R[0]
        elif mn in ('WAITVM', 'WAITLGKM', 'FENCE'):
            self.kind = 'sym'; self.dst = set(); self.src = set()
        else:
            raise ValueError('unknown instr: ' + text)

def I(text, tag=None): return Ins(text, tag)
def waitvm(*tags):
    i = Ins('WAITVM'); i.tag = tags; return i
def waitlgkm0():
    return Ins('WAITLGKM')

def need_states(p, c):
    n = 0
    vd = {r for r in p.dst if r[0] != 's'}
    sd = {r for r in p.dst if r[0] == 's'}
    if p.kind == 'valu':
        if c.kind == 'mfma' and vd & c.src: n = max(n, 2)
        if c.kind == 'valu':
            if p.mn.startswith(TRANS) and vd & c.src: n = max(n, 1)
            if c.mn.startswith('v_permlane') and vd & c.src: n = max(n, 2)
            if '_dpp' in c.mn and vd & c.src: n = max(n, 2)
            if c.mn.startswith(('v_readlane', 'v_readfirstlane')) and vd & c.src: n = max(n, 1)
            if ('_sdwa' in p.mn or 'op_sel' in p.text) and vd & (c.src | c.dst): n = max(n, 1)
            if sd & c.src: n = max(n, 4 if 'lane' in c.mn else 2)
            if p.mn.startswith('v_dot') and vd & (c.src | c.dst) and c.mn != p.mn: n = max(n, 3)
        if c.kind == 'vmem' and sd & c.src: n = max(n, 5)
        if c.kind in ('salu', 'smem') and sd & c.src: n = max(n, 1)
    if p.kind == 'mfma':
        big = p.passes == 8
        if c.kind == 'mfma':
            if p.dst & c.srcc and not (p.dst == c.srcc and p.passes == c.passes): n = max(n, 10 if big else 6)
            if p.dst & c.srcab: n = max(n, 12 if big else 8)
            if p.dst & c.dst and not (p.dst & c.srcc): n = max(n, 10 if big else 6)
        elif c.kind in ('valu', 'ds', 'vmem'):
            if p.dst & (c.src | c.dst): n = max(n, 12 if big else 8)
            if c.kind == 'valu' and p.srcc & c.dst: n = max(n, 7 if big else 3)
    if p.kind == 'salu' and ('s', 124) in p.dst and c.kind == 'vmem' and ('s', 124) in c.src: n = max(n, 1)
    if p.kind == 'vmem' and p.data and p.data & c.dst: n = max(n, 2 if c.kind in ('valu', 'mfma') else 1)
    return n

def states(i):
    if i.mn == 's_nop': return int(i.ops[0]) + 1
    if i.kind in ('label', 'sym'): return 0
    return 1

def finalize(stream, name=''):
    out = []
    vm = []
    lg = []
    def emit_wait(nv=None, nl=None):
        parts = []
        if nv is not None:
            nv = min(nv, 63); parts.append(f'vmcnt({nv})'); del vm[:max(0, len(vm) - nv)]
        if nl is not None:
            nl = min(nl, 15); parts.append(f'lgkmcnt({nl})'); del lg[:max(0, len(lg) - nl)]
        if out and out[-1].mn == 's_waitcnt':
            prev = dict(re.findall(r'(vmcnt|lgkmcnt)\((\d+)\)', out[-1].text))
            cur = dict(re.findall(r'(vmcnt|lgkmcnt)\((\d+)\)', ' '.join(parts)))
            for k, v in cur.items(): prev[k] = str(min(int(v), int(prev.get(k, 99))))
            out[-1] = Ins('s_waitcnt ' + ' '.join(f'{k}({v})' for k, v in prev.items()))
        else:
            out.append(Ins('s_waitcnt ' + ' '.join(parts)))
    for ins in stream:
        if ins.mn == 'WAITVM':
            idx = [k for k, (t, _) in enumerate(vm) if t in ins.tag or 'ALL' in ins.tag]
            if idx: emit_wait(nv=len(vm) - 1 - max(idx))
            continue
        if ins.mn == 'WAITLGKM':
            if lg: emit_wait(nl=0)
            continue
        if ins.mn == 's_waitcnt':
            d = dict(re.findall(r'(vmcnt|lgkmcnt)\((\d+)\)', ins.text))
            emit_wait(nv=int(d['vmcnt']) if 'vmcnt' in d else None, nl=int(d['lgkmcnt']) if 'lgkmcnt' in d else None)
            continue
        touch = ins.src | ins.dst
        nv = nl = None
        idx = [k for k, (_, d) in enumerate(vm) if d & touch]
        if idx and not (ins.kind == 'vmem' and not (ins.src & set().union(*[vm[k][1] for k in idx]))):
            nv = len(vm) - 1 - max(idx)
        idx = [k for k, (_, d) in enumerate(lg) if d & touch]
        if idx:
            nl = len(lg) - 1 - max(idx)
            if any(k == 'smem' for k, _ in lg): nl = 0
        if nv is not None or nl is not None: emit_wait(nv, nl)
        dist = 0; need = 0
        for p in reversed(out):
            if dist >= 20: break
            n = need_states(p, ins)
            if n > dist: need = max(need, n - dist)
            dist += states(p)
        while need > 0:
            k = min(need, 16); out.append(Ins(f's_nop {k - 1}')); need -= k
        out.append(ins)
        if ins.kind == 'vmem': vm.append((ins.tag, ins.dst))
        elif ins.kind == 'ds': lg.append(('ds', ins.dst))
        elif ins.kind == 'smem': lg.append(('smem', ins.dst))
        assert len(vm) <= 63 or True
    return out

def text(stream):
    return ''.join((i.text if i.kind == 'label' else '  ' + i.text) + '\n' for i in stream)

def interleave(main, fill, start=0, end=None):
    end = len(main) if end is None else end
    n = end - start
    out = []
    k = 0
    for j, m in enumerate(main):
        out.append(m)
        if start <= j < end:
            upto = (len(fill) * (j - start + 1) + n - 1) // n
            while k < upto:
                f = fill[k]; k += 1
                out.extend(f if isinstance(f, list) else [f])
    while k < len(fill):
        f = fill[k]; k += 1
        out.extend(f if isinstance(f, list) else [f])
    return out

class Alloc:
    def __init__(self, start, limit): self.n = start; self.limit = limit; self.hi = start
    def __call__(self, cnt=1, align=1):
        if cnt > 1 and align == 1: align = 2
        self.n = (self.n + align - 1) // align * align
        r = self.n; self.n += cnt; self.hi = max(self.hi, self.n)
        assert self.n <= self.limit, f'out of registers {self.n}'
        return r

def v(r, n=1): return f'v{r}' if n == 1 else f'v[{r}:{r + n - 1}]'
def s(r, n=1): return f's{r}' if n == 1 else f's[{r}:{r + n - 1}]'
```

```python
import sys
from asmlib import *

STAMP = '--stamp' in sys.argv
NAME = 'recurrent_scan__sliding_local_dilated__swiglu_ffn__prompt'
LOG2E = 0x3fb8aa3b
ACT_BYTES = 64 * 144 * 1024
STAMP_OFF = 16 << 20

def srd(d, p, nbytes):
    return [I(f's_mov_b32 s{d}, s{p}'), I(f's_mov_b32 s{d+1}, s{p+1}'), I(f's_mov_b32 s{d+2}, {nbytes:#x}'), I(f's_mov_b32 s{d+3}, 0x20000')]

def kd(name, nv, ns=102):
    return f'''.section .rodata,"a"
.p2align 6
.amdhsa_kernel {name}
  .amdhsa_next_free_vgpr {nv}
  .amdhsa_next_free_sgpr {ns}
  .amdhsa_accum_offset {(nv + 3) // 4 * 4}
  .amdhsa_group_segment_fixed_size 0
  .amdhsa_kernarg_size 80
  .amdhsa_user_sgpr_count 2
  .amdhsa_user_sgpr_kernarg_segment_ptr 1
  .amdhsa_system_sgpr_workgroup_id_x 1
  .amdhsa_float_denorm_mode_32 3
.end_amdhsa_kernel
'''

def stamp(k):
    return [I(f's_memrealtime s[{70+2*k}:{71+2*k}]')] if STAMP else []
def cstamp(k):
    return [I(f's_memtime s[{70+2*k}:{71+2*k}]')] if STAMP else []
def stamp_out(n, sws, swave, kern, tmp):
    if not STAMP: return []
    o = [waitlgkm0(), I(f's_lshl_b32 s68, s2, 3'), I(f's_add_u32 s68, s68, s{swave}'), I('s_lshl_b32 s68, s68, 7'),
         I(f's_add_u32 s68, s68, {STAMP_OFF + kern * (1 << 20):#x}'), I(f'v_mov_b32 v{tmp}, s68')]
    for k in range(n):
        o += [I(f'v_mov_b32 v{tmp+1}, s{70+2*k}'), I(f'global_store_dword v{tmp}, v{tmp+1}, s[{sws}:{sws+1}] offset:{4*k}')]
    return o

XBASE, XSLOT = 6144, 18432
WBASE, WSLOT = 61440, 20480
ST4, SMO, SRO = 0, 2304, 2880
sX, sQ, sG, sU, sM, sWS = 20, 24, 28, 32, 36, 40
sW, sC, sTH, sRB, sIDX, sTYPE, sKq, sKg, s64k, sLW, sLX, sLH = 44, 45, 46, 47, 48, 49, 50, 51, 52, 53, 54, 55
sST = 56
sT0, sT1 = 64, 65

class K1R: pass

def k1_common():
    R = K1R(); A = Alloc(1, 256); R.A = A
    for n in 'L t0 t1 t2 Xd Xh Wq Wg Wm Xr0 Xr1 Xs0 Xs1 Wa Wb Ma Mb L16 s1 s2 h1 h2 u0 u1'.split(): setattr(R, n, A())
    R.ones = A(4)
    o = []
    o += [I('s_cmp_ge_u32 s2, 256'), I('s_cbranch_scc1 k1_exit')]
    o += stamp(0) + cstamp(8)
    o += [I('s_load_dwordx4 s[4:7], s[0:1], 0'), I('s_load_dwordx4 s[12:15], s[0:1], 32'), I('s_load_dwordx2 s[16:17], s[0:1], 72')]
    o += [I(f'v_lshrrev_b32 v{R.t0}, 6, v0'), I(f'v_and_b32 v{R.L}, 63, v0'), I(f'v_readfirstlane_b32 s{sW}, v{R.t0}')]
    o += [I('s_getpc_b64 s[18:19]'), I(f'v_lshlrev_b32 v{R.t1}, 7, v0'), I(f'global_load_dword v{R.t2}, v{R.t1}, s[18:19]', 'pf')]
    o += [I('s_and_b32 s3, s2, 7'), I('s_lshr_b32 s66, s2, 3'),
          I(f's_lshr_b32 s{sRB}, s3, 2'), I(f's_lshl_b32 s{sRB}, s{sRB}, 3'), I('s_and_b32 s67, s66, 7'), I(f's_add_u32 s{sRB}, s{sRB}, s67'),
          I('s_lshr_b32 s66, s66, 3'), I(f's_and_b32 s{sTYPE}, s66, 1'), I('s_lshr_b32 s66, s66, 1'),
          I('s_and_b32 s3, s3, 3'), I('s_lshl_b32 s3, s3, 1'), I(f's_add_u32 s{sIDX}, s3, s66'),
          I(f's_and_b32 s{sC}, s{sW}, 3'), I(f's_lshr_b32 s{sTH}, s{sW}, 2'),
          I(f's_mov_b32 s{sKq}, 0'), I(f's_mov_b32 s{sKg}, 0'), I(f's_mov_b32 s{s64k}, 0x10000'),
          I(f's_lshl_b32 s{sLW}, s{sC}, 10'), I(f's_lshl_b32 s{sLX}, s{sW}, 10'), I(f's_and_b32 s{sLH}, s{sLX}, 1024')]
    L = R.L
    o += [I(f'v_lshrrev_b32 v{R.t0}, 3, v{L}'),
          I(f'v_bfe_u32 v{R.t1}, v{L}, 4, 2'), I(f's_and_b32 s3, s{sW}, 1'), I('s_lshl_b32 s66, s3, 2'),
          I(f'v_or_b32 v{R.t1}, s66, v{R.t1}'), I(f'v_and_b32 v{R.u0}, 7, v{L}'), I(f'v_xor_b32 v{R.t1}, v{R.t1}, v{R.u0}'),
          I(f'v_lshlrev_b32 v{R.t1}, 4, v{R.t1}'), I(f'v_lshl_add_u32 v{R.t1}, v{R.t0}, 10, v{R.t1}'),
          I(f's_lshl_b32 s{sT0}, s{sRB}, 17'), I(f's_lshl_b32 s67, s{sW}, 13'), I(f's_add_u32 s67, s67, s{sT0}'),
          I(f'v_add_u32 v{R.Xd}, s67, v{R.t1}'),
          I('s_lshl_b32 s67, s3, 13'), I(f's_add_u32 s67, s67, s{sT0}'), I('s_sub_u32 s67, s67, 0x4000'),
          I(f'v_add_u32 v{R.Xh}, s67, v{R.t1}')]
    o += [I(f'v_bfe_u32 v{R.t1}, v{L}, 4, 1'), I(f'v_lshlrev_b32 v{R.t1}, 1, v{R.t1}'), I(f'v_or_b32 v{R.t1}, s66, v{R.t1}'),
          I(f'v_xor_b32 v{R.t1}, v{R.t1}, v{R.u0}'), I(f'v_lshlrev_b32 v{R.t1}, 4, v{R.t1}'),
          I(f's_lshl_b32 s67, s{sC}, 3'), I(f'v_add_u32 v{R.t0}, s67, v{R.t0}'),
          I(f'v_mul_u32_u24 v{R.Wq}, 3072, v{R.t0}'), I(f'v_mul_u32_u24 v{R.Wg}, 3584, v{R.t0}'),
          I(f's_lshl_b32 s67, s{sIDX}, 7'), I(f'v_add3_u32 v{R.Wq}, v{R.Wq}, s67, v{R.t1}'),
          I('s_add_u32 s67, s67, 2560'), I(f's_mul_i32 s68, s{sIDX}, 320'), I(f's_and_b32 s69, s{sIDX}, 1'), I('s_lshl_b32 s3, s69, 6'),
          I('s_add_u32 s3, s3, s68'), I(f's_cmp_eq_u32 s{sTYPE}, 0'), I(f's_cselect_b32 s{sT1}, s67, s3'),
          I(f'v_add3_u32 v{R.Wg}, v{R.Wg}, s{sT1}, v{R.t1}'),
          I('s_xor_b32 s69, s69, 1'), I('s_lshl_b32 s69, s69, 8'), I('s_add_u32 s68, s68, s69'),
          I(f'v_lshrrev_b32 v{R.t0}, 2, v{L}'), I(f's_lshr_b32 s3, s{sC}, 1'), I('s_lshl_b32 s3, s3, 4'), I(f'v_add_u32 v{R.t0}, s3, v{R.t0}'),
          I(f'v_mul_u32_u24 v{R.Wm}, 3584, v{R.t0}'),
          I(f'v_lshrrev_b32 v{R.t1}, 5, v{L}'), I('s_lshr_b32 s3, s66, 1'), I(f'v_or_b32 v{R.t1}, s3, v{R.t1}'),
          I(f'v_and_b32 v{R.u0}, 3, v{L}'), I(f'v_xor_b32 v{R.t1}, v{R.t1}, v{R.u0}'), I(f'v_lshlrev_b32 v{R.t1}, 4, v{R.t1}'),
          I(f'v_add3_u32 v{R.Wm}, v{R.Wm}, s68, v{R.t1}')]
    o += [waitlgkm0()]
    o += srd(sX, 4, 2048 * 1024) + srd(sQ, 6, 512 * 3072) + srd(sG, 12, 512 * 3584) + srd(sU, 14, 512 * 3584) + srd(sWS, 16, ACT_BYTES)
    o += [I(f's_bitcmp1_b32 s{sC}, 0'), I(f's_cselect_b32 s{sM}, s14, s12'), I(f's_cselect_b32 s{sM+1}, s15, s13'),
          I(f's_mov_b32 s{sM+2}, {512*3584:#x}'), I(f's_mov_b32 s{sM+3}, 0x20000')]
    o += [I(f's_lshl_b32 s3, s{sRB}, 1'), I(f's_add_u32 s3, s3, s{sTH}'), I(f's_mul_i32 s3, s3, {2*144*1024}'),
          I(f's_add_u32 s3, s3, s{sLW}'),
          I(f's_lshl_b32 s67, s{sT1}, 5'), I('s_add_u32 s67, s67, 0x8000'),
          I(f's_add_u32 s{sST}, s3, s67'), I(f's_add_u32 s{sST+1}, s{sST}, {144*1024}'),
          I(f's_add_u32 s69, s{sST}, 4096'), I(f's_lshl_b32 s67, s{sIDX}, 12'), I('s_add_u32 s67, s67, s3'),
          I(f's_cmp_eq_u32 s{sTYPE}, 0'), I(f's_cselect_b32 s{sST+2}, s67, s69'), I(f's_add_u32 s{sST+3}, s{sST+2}, {144*1024}'),
          I(f's_sub_u32 s3, s3, s{sLW}'), I('s_lshl_b32 s68, s68, 5'), I('s_add_u32 s3, s3, s68'), I(f's_lshl_b32 s67, s{sC}, 9'),
          I('s_add_u32 s3, s3, s67'), I(f's_add_u32 s{sST+4}, s3, 0x8000')]
    o += [I(f's_cmp_eq_u32 s{sTYPE}, 0'), I('s_cbranch_scc0 k1_B'), I(f's_cmp_eq_u32 s{sTH}, 0'), I('s_cbranch_scc0 k1_A1'), I('s_branch k1_A0'),
          I('k1_B:'), I(f's_cmp_eq_u32 s{sTH}, 0'), I('s_cbranch_scc0 k1_B1'), I('s_branch k1_B0'),
          I('k1_exit:'), I('s_endpgm')]
    return R, o

def k1_readaddr(R):
    L = R.L; o = []
    o += [I(f'v_and_b32 v{R.t0}, 15, v{L}'), I(f'v_lshrrev_b32 v{R.t1}, 4, v{L}'), I(f'v_bfe_u32 v{R.u0}, v{L}, 1, 3'),
          I(f'v_xor_b32 v{R.u0}, v{R.u0}, v{R.t1}'), I(f'v_lshlrev_b32 v{R.u0}, 4, v{R.u0}'), I(f'v_lshl_add_u32 v{R.u0}, v{R.t0}, 7, v{R.u0}'),
          I(f's_lshl_b32 s3, s{sTH}, 13'), I(f'v_add_u32 v{R.Xr0}, s3, v{R.u0}'), I(f'v_xor_b32 v{R.Xr1}, 64, v{R.Xr0}'),
          I(f's_lshl_b32 s3, s{sW}, 11'), I(f'v_add_u32 v{R.Xs0}, s3, v{R.u0}'), I(f'v_xor_b32 v{R.Xs1}, 64, v{R.Xs0}')]
    o += [I(f'v_bfe_u32 v{R.u0}, v{L}, 3, 2'), I(f'v_xor_b32 v{R.u0}, s{sC}, v{R.u0}'), I(f'v_lshlrev_b32 v{R.u0}, 5, v{R.u0}'),
          I(f'v_lshl_add_u32 v{R.u0}, v{R.t1}, 10, v{R.u0}'), I(f'v_bfe_u32 v{R.u1}, v{L}, 2, 2'), I(f'v_lshl_add_u32 v{R.u0}, v{R.u1}, 7, v{R.u0}'),
          I(f'v_and_b32 v{R.t0}, 3, v{L}'), I(f'v_lshl_add_u32 v{R.u0}, v{R.t0}, 3, v{R.u0}'),
          I(f'v_add_u32 v{R.Wa}, {WBASE}, v{R.u0}'), I(f'v_add_u32 v{R.Wb}, {WBASE + 3*WSLOT}, v{R.u0}')]
    o += [I(f'v_bfe_u32 v{R.u0}, v{L}, 4, 1'), I(f'v_and_b32 v{R.t0}, 2, v{L}'), I(f'v_or_b32 v{R.t2}, v{R.u0}, v{R.t0}'),
          I(f'v_xor_b32 v{R.t2}, s{sC}, v{R.t2}'), I(f'v_lshlrev_b32 v{R.t2}, 4, v{R.t2}'),
          I(f'v_lshl_add_u32 v{R.t2}, v{R.t0}, 9, v{R.t2}'), I(f'v_lshl_add_u32 v{R.t2}, v{R.u0}, 9, v{R.t2}'),
          I(f'v_lshl_add_u32 v{R.t2}, v{R.u1}, 6, v{R.t2}'), I(f'v_lshrrev_b32 v{R.u0}, 5, v{L}'), I(f'v_lshl_add_u32 v{R.t2}, v{R.u0}, 11, v{R.t2}'),
          I(f'v_and_b32 v{R.u0}, 1, v{L}'), I(f'v_lshl_add_u32 v{R.t2}, v{R.u0}, 3, v{R.t2}'),
          I(f'v_add_u32 v{R.Ma}, {WBASE}, v{R.t2}'), I(f'v_add_u32 v{R.Mb}, {WBASE + 3*WSLOT}, v{R.t2}')]
    o += [I(f'v_lshlrev_b32 v{R.L16}, 4, v{L}')]
    for j in range(4): o.append(I(f'v_mov_b32 v{R.ones + j}, 0x3f803f80'))
    for r in (R.s1, R.s2, R.h1, R.h2): o.append(I(f'v_mov_b32 v{r}, 0'))
    return o

def dma(voff, srdr, soff, off, ldsbase_s, ldsimm, tag):
    so = f's{soff}' if soff is not None else '0'
    return [I(f's_add_u32 m0, s{ldsbase_s}, {ldsimm - off}'),
            I(f'buffer_load_dwordx4 v{voff}, s[{srdr}:{srdr+3}], {so} offen' + (f' offset:{off}' if off else '') + ' lds', tag)]

def k1_dmas(R, typ, th, st):
    g = []
    for e in (1, 0):
        S2 = st + 5 - e
        if S2 % 2 == 0 and 0 <= S2 // 2 < 8:
            S = S2 // 2; base = XBASE + (S % 3) * XSLOT
            g.append(dma(R.Xd, sX, s64k if e else None, S * 128, sLX, base + 2048 + e * 8192, f'X{S}'))
            if e == 1 and typ == 'A' and th == 1:
                g.append(dma(R.Xh, sX, None, S * 128, sLH, base, f'X{S}'))
    sg = st + 5
    if 0 <= sg < 16:
        base = WBASE + (sg % 5) * WSLOT; t = f'W{sg}'
        if typ == 'A':
            P = [(R.Wq, sQ, sKq, 0), (R.Wq, sQ, sKq, 1024), (R.Wq, sQ, sKq, 2048), (R.Wg, sG, sKg, 0), (R.Wg, sU, sKg, 0)]
        else:
            P = [(R.Wg, sG, sKg, 0), (R.Wg, sG, sKg, 128), (R.Wg, sU, sKg, 0), (R.Wg, sU, sKg, 128), (R.Wm, sM, sKg, 0)]
        ps = [2 * th, 2 * th + 1] + ([4] if (sg & 1) == th else [])
        for p in ps: g.append(dma(P[p][0], P[p][1], P[p][2], P[p][3], sLW, base + p * 4096, t))
        upd = [I(f's_add_u32 s{sKg}, s{sKg}, {32*3584}')]
        if typ == 'A': upd.append(I(f's_add_u32 s{sKq}, s{sKq}, {32*3072}'))
        g[-1] = g[-1] + upd
    return g

def k1_reads(R, typ, th, st):
    b = st & 1; S = st // 2; xo = XBASE + (S % 3) * XSLOT
    xr, xs = (R.Xr1, R.Xs1) if st & 1 else (R.Xr0, R.Xs0)
    slot = st % 5
    wr, mr, wo = (R.Wa, R.Ma, slot * WSLOT) if slot < 3 else (R.Wb, R.Mb, (slot - 3) * WSLOT)
    def w(p):
        if typ == 'B' and p == 4:
            return [I(f'ds_read_b64_tr_b16 {v(R.wf[b][p] + 2*h, 2)}, v{mr} offset:{wo + 16384 + 256*h}') for h in range(2)]
        return [I(f'ds_read_b64_tr_b16 {v(R.wf[b][p] + 2*h, 2)}, v{wr} offset:{wo + 4096*p + 512*h}') for h in range(2)]
    def x(i): return [I(f'ds_read_b128 {v(R.xf[b][i], 4)}, v{xr} offset:{xo + (i+1)*2048}')]
    o = w(0) + x(0) + x(1) + x(2) + x(3) + w(1) + w(2) + w(3) + w(4)
    if R.halo: o += x(-1)
    o += [I(f'ds_read_b128 {v(R.sf[b], 4)}, v{xs} offset:{xo + 2048}')]
    return o

def mfma16(d, a, b, c):
    return I(f'v_mfma_f32_16x16x32_bf16 {v(d,4)}, {v(a,4)}, {v(b,4)}, ' + (v(c,4) if c is not None else '0'))

def k1_mfmas(R, typ, th, st):
    b = st & 1; o = []
    for p in range(5):
        tiles = [0, 1, 2, 3] + ([-1] if (R.halo and p in (1, 2)) else [])
        for i in tiles:
            d = R.acc[p][i]; c = d if st else None
            if typ == 'A' and p == 2: o.append(mfma16(d, R.xf[b][i], R.wf[b][p], c))
            else: o.append(mfma16(d, R.wf[b][p], R.xf[b][i], c))
        if p in R.csp:
            d = R.cs[p]; c = d if st else None
            if typ == 'A' and p == 2: o.append(mfma16(d, R.ones, R.wf[b][p], c))
            else: o.append(mfma16(d, R.wf[b][p], R.ones, c))
    return o

def k1_stats(R, f, a1, a2):
    o = []
    for d in range(4):
        o += [I(f'v_lshlrev_b32 v{R.u0}, 16, v{f+d}'), I(f'v_and_b32 v{R.u1}, 0xffff0000, v{f+d}'),
              I(f'v_add_f32 v{a1}, v{a1}, v{R.u0}'), I(f'v_fmac_f32 v{a2}, v{R.u0}, v{R.u0}'),
              I(f'v_add_f32 v{a1}, v{a1}, v{R.u1}'), I(f'v_fmac_f32 v{a2}, v{R.u1}, v{R.u1}')]
    return o

def bf16r(d, src):
    return [I(f'v_cvt_pk_bf16_f32 v{d}, v{src}, v{src}'), I(f'v_and_b32 v{d}, 0xffff0000, v{d}')]

def k1_statfin(R, a1, a2, T, tokbase_s, tokimm):
    t = T + 4; ad = T + 5
    o = [I(f'v_permlane16_swap_b32 v{a1}, v{a2}'), I(f'v_add_f32 v{a1}, v{a1}, v{a2}'), I(f'v_mov_b32 v{a2}, v{a1}'),
         I(f'v_permlane32_swap_b32 v{a1}, v{a2}'), I(f'v_add_f32 v{a1}, v{a1}, v{a2}'), I(f'v_mov_b32 v{a2}, v{a1}'),
         I(f'v_permlane16_swap_b32 v{a1}, v{a2}'),
         I(f'v_mul_f32 v{a1}, 0x3b000000, v{a1}'), I(f'v_mul_f32 v{a2}, 0x3b000000, v{a2}'),
         I(f'v_fma_f32 v{a2}, -v{a1}, v{a1}, v{a2}'), I(f'v_max_f32 v{a2}, 0, v{a2}')]
    o += bf16r(T, a1) + bf16r(t, a2) + [I(f'v_add_f32 v{t}, 0x3727c5ac, v{t}')] + bf16r(t, t) + [I(f'v_sqrt_f32 v{t}, v{t}')] + bf16r(t, t)
    o += [I(f'v_rcp_f32 v{T+1}, v{t}'), I(f'v_mul_f32 v{T+3}, v{t}, v{t}'), I(f'v_mul_f32 v{T+2}, {LOG2E | 0x80000000:#x}, v{T+1}')]
    o += [I(f'v_and_b32 v{ad}, 15, v{R.L}')]
    if tokbase_s is not None: o += [I(f's_lshl_b32 s3, s{tokbase_s}, 4'), I(f'v_add_u32 v{ad}, s3, v{ad}')]
    o += [I(f'v_lshlrev_b32 v{t}, 4, v{ad}'), I(f'v_lshlrev_b32 v{ad}, 2, v{ad}'),
          I(f'ds_write_b128 v{t}, {v(T,4)} offset:{ST4 + tokimm*16}'),
          I(f'ds_write_b32 v{ad}, v{T} offset:{SMO + tokimm*4}'), I(f'ds_write_b32 v{ad}, v{T+1} offset:{SRO + tokimm*4}')]
    return o

def ffn_tail(g, u, st, T, out):
    o = []
    for r in range(4): o.append(I(f'v_mul_f32 v{T+r}, v{g+r}, v{st+2}'))
    for r in range(4): o.append(I(f'v_exp_f32 v{T+r}, v{T+r}'))
    for r in range(4): o.append(I(f'v_mul_f32 v{g+r}, v{g+r}, v{u+r}'))
    for r in range(4): o.append(I(f'v_fma_f32 v{T+r}, v{T+r}, v{st+3}, v{st+3}'))
    for r in range(4): o.append(I(f'v_rcp_f32 v{T+r}, v{T+r}'))
    for r in range(4): o.append(I(f'v_mul_f32 v{g+r}, v{g+r}, v{T+r}'))
    o += [I(f'v_cvt_pk_bf16_f32 v{out}, v{g}, v{g+1}'), I(f'v_cvt_pk_bf16_f32 v{out+1}, v{g+2}, v{g+3}')]
    return o
def corr(a, cs, st):
    return [I(f'v_fma_f32 v{a+r}, -v{st}, v{cs+r}, v{a+r}') for r in range(4)]
def store_frag(R, q, soff, voff=None):
    return [I(f'v_permlane16_swap_b32 v{q}, v{q+2}'), I(f'v_permlane16_swap_b32 v{q+1}, v{q+3}'),
            I(f'buffer_store_dwordx4 {v(q,4)}, v{R.L16 if voff is None else voff}, s[{sWS}:{sWS+3}], s{soff} offen')]

def k1_stream(R0, typ, th):
    import copy
    R = copy.copy(R0); A = Alloc(R0.A.n, 256)
    R.halo = typ == 'A' and th == 0
    R.csp = ({0: [0], 1: [1, 2, 3, 4]} if typ == 'A' else {0: [0, 1], 1: [2, 3, 4]})[th]
    R.acc = [{i: A(4) for i in ([-1] if (typ == 'A' and p in (1, 2)) else []) + [0, 1, 2, 3]} for p in range(5)]
    R.cs = [A(4) for p in range(5)]
    F0 = A.n
    R.xf = [{i: A(4) for i in range(-1, 4)} for b in range(2)]
    R.wf = [[A(4) for p in range(5)] for b in range(2)]
    R.sf = [A(4) for b in range(2)]
    o = [I(f'k1_{typ}{th}:')]
    for st in range(-5, -1):
        for g in k1_dmas(R, typ, th, st): o += g
    o += k1_readaddr(R)
    o += [waitvm('X0', 'W0'), I('s_barrier')] + stamp(1)
    for g in k1_dmas(R, typ, th, -1): o += g
    o += k1_reads(R, typ, th, 0)
    for st in range(16):
        tags = [f'W{st+1}', f'X{(st+1)//2}']
        o += [waitlgkm0(), waitvm(*tags), I('s_barrier')]
        if st in (0, 8): o += stamp(2 if st == 0 else 3)
        m = k1_mfmas(R, typ, th, st)
        rd = k1_reads(R, typ, th, st + 1) if st < 15 else []
        dm = k1_dmas(R, typ, th, st)
        va = k1_stats(R, R.sf[st & 1], R.s1, R.s2)
        if R.halo: va += k1_stats(R, R.xf[st & 1][-1], R.h1, R.h2)
        n = len(m)
        slots = [[] for _ in range(n)]
        def spread(items, a, b):
            for k, it in enumerate(items):
                slots[a + k * (b - a) // len(items)].extend(it if isinstance(it, list) else [it])
        if rd: spread(rd, 0, (n * 3) // 4)
        if dm: spread(dm, 2, n - 1)
        spread(va, 0, n)
        for k in range(n): o += [m[k]] + slots[k]
    o += stamp(4)
    E = Alloc(F0, 256)
    T = E(8, 4)
    o += k1_statfin(R, R.s1, R.s2, T, sW, 16)
    if R.halo: o += k1_statfin(R, R.h1, R.h2, T, None, 0)
    ex = E()
    o += [I(f'v_add_u32 v{ex}, s{sLW}, v{R.L16}'), I(f'v_add_u32 v{ex}, {WBASE}, v{ex}')]
    for p in R.csp: o.append(I(f'ds_write_b128 v{ex}, {v(R.cs[p],4)} offset:{p*4096}'))
    if R.halo:
        for p in (1, 2): o.append(I(f'ds_write_b128 v{ex}, {v(R.acc[p][3],4)} offset:{(4+p)*4096}'))
    o += [waitlgkm0(), I('s_barrier')]
    for p in range(5):
        if p not in R.csp: o.append(I(f'ds_read_b128 {v(R.cs[p],4)}, v{ex} offset:{p*4096}'))
    if typ == 'A' and th == 1:
        for p in (1, 2): o.append(I(f'ds_read_b128 {v(R.acc[p][-1],4)}, v{ex} offset:{(4+p)*4096}'))
    sa = E(); stq = {i: E(4) for i in range(-1, 4)}
    o += [I(f'v_and_b32 v{sa}, 0xf0, v{R.L16}')]
    for i in range(-1 if typ == 'A' else 0, 4):
        o.append(I(f'ds_read_b128 {v(stq[i],4)}, v{sa} offset:{ST4 + (th*64 + (i+1)*16)*16}'))
    Q = [E(4), E(4)]
    def ffn_pair(pg, pu, so):
        o = []
        for hf in range(2):
            for i in (2*hf, 2*hf+1):
                o += corr(R.acc[pg][i], R.cs[pg], stq[i]) + corr(R.acc[pu][i], R.cs[pu], stq[i])
                o += ffn_tail(R.acc[pg][i], R.acc[pu][i], stq[i], T, Q[hf] + 2*(i & 1))
            o += store_frag(R, Q[hf], so + hf)
        return o
    if typ == 'B':
        stm = [E(4), E(4)]; sb = E(); vo = E()
        o += [I(f'v_and_b32 v{sb}, 0x200, v{R.L16}'), I(f'v_add_u32 v{sb}, v{sb}, v{sa}')]
        for i in range(2): o.append(I(f'ds_read_b128 {v(stm[i],4)}, v{sb} offset:{ST4 + (th*64 + (i+1)*16)*16}'))
        o += ffn_pair(0, 2, sST) + ffn_pair(1, 3, sST + 2)
        for i in range(4): o += corr(R.acc[4][i], R.cs[4], stq[i])
        o += [I(f'v_lshrrev_b32 v{vo}, 5, v{R.L}'), I(f'v_mul_u32_u24 v{vo}, {144*1024 - 512}, v{vo}'), I(f'v_add_u32 v{vo}, v{vo}, v{R.L16}')]
        for i in range(2):
            for r in range(4): o.append(I(f'v_permlane32_swap_b32 v{R.acc[4][i]+r}, v{R.acc[4][i+2]+r}'))
        for i in range(2): o += ffn_tail(R.acc[4][i], R.acc[4][i+2], stm[i], T, Q[0] + 2*i)
        o += store_frag(R, Q[0], sST + 4, vo)
    else:
        vm, vr = E(4), E(4); sb = E()
        kb, qb, vb = E(10), E(8), E(10)
        o += [I(f'v_and_b32 v{sb}, 0x30, v{R.L}')]
        for i in range(-1, 4):
            a = R.acc[2][i]; off = (th*64 + (i+1)*16) * 4
            o += [I(f'ds_read_b128 {v(vm,4)}, v{sb} offset:{SMO + off}'), I(f'ds_read_b128 {v(vr,4)}, v{sb} offset:{SRO + off}')]
            k = R.acc[1][i]
            o += corr(k, R.cs[1], stq[i]) + [I(f'v_mul_f32 v{k+r}, v{k+r}, v{stq[i]+1}') for r in range(4)]
            o += [I(f'v_cvt_pk_bf16_f32 v{kb+2*(i+1)+j}, v{k+2*j}, v{k+2*j+1}') for j in range(2)]
            if i >= 0:
                q = R.acc[0][i]
                o += corr(q, R.cs[0], stq[i]) + [I(f'v_cvt_pk_bf16_f32 v{qb+2*i+j}, v{q+2*j}, v{q+2*j+1}') for j in range(2)]
            o += [I(f'v_fma_f32 v{a+r}, -v{vm+r}, v{R.cs[2]}, v{a+r}') for r in range(4)]
            o += [I(f'v_mul_f32 v{a+r}, v{a+r}, v{vr+r}') for r in range(4)]
            o += [I(f'v_cvt_pk_bf16_f32 v{vb+2*(i+1)+j}, v{a+2*j}, v{a+2*j+1}') for j in range(2)]
        negc = R.acc[2][-1]
        if th == 0:
            o += [I(f's_cmp_eq_u32 s{sRB}, 0'), I('s_cselect_b32 s3, 0xf149f2ca, 0')] + [I(f'v_mov_b32 v{negc+r}, s3') for r in range(4)]
        def m16(d, a, b, c): return I(f'v_mfma_f32_16x16x16_bf16 {v(d,4)}, {v(a,2)}, {v(b,2)}, ' + (v(c,4) if c is not None else '0'))
        for i in range(4):
            o += [m16(R.acc[0][i], kb + 2*(i+1), qb + 2*i, None), m16(R.acc[1][i], kb + 2*i, qb + 2*i, negc if (i == 0 and th == 0) else None)]
        mP, mC0, mC1, M = vm, vm + 1, vm + 2, vr
        t = vm + 3; t2 = sb
        o += [I(f'v_bfe_i32 v{mP}, v{R.L}, 0, 1'),
              I(f'v_and_b32 v{t}, 14, v{R.L}'), I(f'v_lshrrev_b32 v{t2}, 2, v{sb}'), I(f'v_sub_u32 v{t}, v{t}, v{t2}'),
              I(f'v_not_b32 v{mC0}, v{t}'), I(f'v_ashrrev_i32 v{mC0}, 31, v{mC0}'),
              I(f'v_sub_u32 v{mC1}, 1, v{t}'), I(f'v_ashrrev_i32 v{mC1}, 31, v{mC1}'),
              I(f'v_xor_b32 v{t}, 0xffff, v{mP}'),
              I(f'v_and_b32 v{M+2}, v{t}, v{mC0}'), I(f'v_and_b32 v{M+3}, v{t}, v{mC1}'),
              I(f'v_xor_b32 v{M}, v{t}, v{M+2}'), I(f'v_xor_b32 v{M+1}, v{t}, v{M+3}')]
        o += ffn_pair(3, 4, sST)
        sel = lambda d, m, a, b: I(f'v_bitop3_b32 v{d}, v{m}, v{a}, v{b} bitop3:0xca')
        for i in range(4):
            c, p = R.acc[0][i], R.acc[1][i]
            o += [sel(c, mP, c+1, c), sel(c+2, mP, c+3, c+2), sel(p, mP, p+1, p), sel(p+2, mP, p+3, p+2),
                  sel(c, mC0, c, p), sel(c+2, mC1, c+2, p+2), I(f'v_max_f32 v{c+1}, v{c}, v{c+2}'), I(f'v_mov_b32 v{c+3}, v{c+1}')]
        for sw in ('16', '32'):
            for i in range(4): c = R.acc[0][i]; o.append(I(f'v_permlane{sw}_swap_b32 v{c+1}, v{c+3}'))
            for i in range(4):
                c = R.acc[0][i]; o.append(I(f'v_max_f32 v{c+1}, v{c+1}, v{c+3}'))
                if sw == '16': o.append(I(f'v_mov_b32 v{c+3}, v{c+1}'))
        for i in range(4):
            c, p = R.acc[0][i], R.acc[1][i]
            o += [I(f'v_mul_f32 v{c+3}, 0xbe800000, v{stq[i]+2}'), I(f'v_sub_f32 v{c}, v{c}, v{c+1}'), I(f'v_sub_f32 v{c+2}, v{c+2}, v{c+1}'),
                  I(f'v_mul_f32 v{c}, v{c}, v{c+3}'), I(f'v_mul_f32 v{c+2}, v{c+2}, v{c+3}'), I(f'v_exp_f32 v{c}, v{c}'), I(f'v_exp_f32 v{c+2}, v{c+2}')]
        for i in range(4):
            c, p = R.acc[0][i], R.acc[1][i]
            o += [I(f'v_cvt_pk_bf16_f32 v{c}, v{c}, v{c}'), I(f'v_cvt_pk_bf16_f32 v{c+2}, v{c+2}, v{c+2}'),
                  I(f'v_and_b32 v{p}, v{c}, v{M}'), I(f'v_and_b32 v{p+1}, v{c+2}, v{M+1}'), I(f'v_and_b32 v{p+2}, v{c}, v{M+2}'), I(f'v_and_b32 v{p+3}, v{c+2}, v{M+3}')]
        for i in range(4):
            o += [mfma16(R.acc[2][i], R.ones, R.acc[1][i], None), mfma16(R.acc[0][i], vb + 2*i, R.acc[1][i], None)]
        for i in range(4): o.append(I(f'v_rcp_f32 v{R.acc[2][i]}, v{R.acc[2][i]}'))
        for hf in range(2):
            for i in (2*hf, 2*hf+1):
                c = R.acc[0][i]
                o += [I(f'v_mul_f32 v{c+r}, v{c+r}, v{R.acc[2][i]}') for r in range(4)]
                o += [I(f'v_cvt_pk_bf16_f32 v{Q[hf]+2*(i&1)+j}, v{c+2*j}, v{c+2*j+1}') for j in range(2)]
            o += store_frag(R, Q[hf], sST + 2 + hf)
    o += stamp(5)
    if STAMP: o += [I('s_waitcnt vmcnt(0)')] + stamp(6) + cstamp(9) + stamp_out(10, 16, sW, 0, T)
    o += [I('s_endpgm')]
    return o, max(A.hi, E.hi)

def gen_k1():
    R, o = k1_common()
    txt = text(finalize(o)); hi = 0
    for typ in 'AB':
        for th in range(2):
            st, h = k1_stream(R, typ, th); hi = max(hi, h)
            txt += '.p2align 6\n' + text(finalize([I('global_load_dword v%d, v%d, s[18:19]' % (R.t2, R.t1), 'pf')] + st)[1:])
    return txt, hi

def gen_k2():
    A = Alloc(1, 256)
    L, t0, t1, t2, L16, Wd0, Wd1, xo = [A() for _ in range(8)]
    wr = [[A(), A()], [A(), A()]]
    xv = A(4)
    acc = [[A(16, 4), A(16, 4)], [A(16, 4), A(16, 4)]]
    D = 8
    af = [[A(4), A(4)] for _ in range(D)]
    wf = [[[A(4), A(4)], [A(4), A(4)]] for _ in range(2)]
    sXx, sWa, sWb, sO, sA = 20, 24, 28, 32, 36
    sW, sKG, sTH, sRT, sCT, sAo, sWo, sLW, sWo2 = 44, 45, 46, 47, 48, 49, 50, 51, 52
    o = [I('s_cmp_ge_u32 s2, 256'), I('s_cbranch_scc1 k2_exit')] + stamp(0) + cstamp(8)
    o += [I('s_load_dwordx2 s[4:5], s[0:1], 0'), I('s_load_dwordx2 s[6:7], s[0:1], 16'), I('s_load_dwordx4 s[12:15], s[0:1], 48'), I('s_load_dwordx2 s[16:17], s[0:1], 72')]
    o += [I(f'v_lshrrev_b32 v{t0}, 6, v0'), I(f'v_and_b32 v{L}, 63, v0'), I(f'v_readfirstlane_b32 s{sW}, v{t0}')]
    o += [I('s_getpc_b64 s[18:19]'), I(f'v_and_b32 v{t1}, 127, v0'), I(f'v_lshlrev_b32 v{t1}, 7, v{t1}'), I(f'global_load_dword v{t2}, v{t1}, s[18:19]', 'pf')]
    o += [I('s_and_b32 s3, s2, 7'), I('s_lshl_b32 s3, s3, 2'), I('s_lshr_b32 s66, s2, 3'), I('s_and_b32 s67, s66, 3'), I(f's_add_u32 s{sRT}, s3, s67'),
          I(f's_lshr_b32 s{sCT}, s66, 2'), I(f's_and_b32 s{sKG}, s{sW}, 3'), I(f's_lshr_b32 s{sTH}, s{sW}, 2'),
          I(f's_lshl_b32 s3, s{sRT}, 1'), I(f's_add_u32 s3, s3, s{sTH}'), I(f's_mul_i32 s3, s3, {144*1024}'), I(f's_mul_i32 s66, s{sKG}, {36*1024}'),
          I(f's_add_u32 s{sAo}, s3, s66'),
          I(f's_lshl_b32 s{sWo2}, s66, 4'),
          I(f's_sub_u32 s67, s{sWo2}, 0x80000'), I(f's_cmp_eq_u32 s{sKG}, 0'), I(f's_cselect_b32 s{sWo}, 0, s67'),
          I(f's_lshl_b32 s{sLW}, s{sKG}, 12'), I(f's_lshl_b32 s3, s{sTH}, 11'), I(f's_add_u32 s{sLW}, s{sLW}, s3')]
    o += [I(f'v_lshlrev_b32 v{L16}, 4, v{L}'),
          I(f'v_bfe_u32 v{t0}, v{L}, 4, 1'), I(f'v_lshlrev_b32 v{t0}, 2, v{t0}'), I(f'v_and_b32 v{t1}, 7, v{L}'), I(f'v_xor_b32 v{t0}, v{t0}, v{t1}'),
          I(f'v_lshlrev_b32 v{t0}, 4, v{t0}'), I(f'v_lshrrev_b32 v{t1}, 3, v{L}'), I(f'v_lshl_add_u32 v{t0}, v{t1}, 10, v{t0}'),
          I(f's_lshl_b32 s3, s{sTH}, 14'), I(f's_lshl_b32 s66, s{sCT}, 7'), I('s_add_u32 s3, s3, s66'),
          I(f'v_add_u32 v{Wd0}, s3, v{t0}'), I(f'v_add_u32 v{Wd1}, 0x2000, v{Wd0}'),
          I(f'v_lshrrev_b32 v{t0}, 3, v0'), I(f'v_and_b32 v{t1}, 7, v0'), I(f'v_lshlrev_b32 v{t1}, 4, v{t1}'), I(f'v_lshl_add_u32 v{t0}, v{t0}, 10, v{t1}'),
          I(f's_lshl_b32 s3, s{sRT}, 16'), I('s_add_u32 s3, s3, s66'), I(f'v_add_u32 v{xo}, s3, v{t0}')]
    o += [waitlgkm0()]
    o += srd(sXx, 4, 2048 * 1024) + srd(sWb, 12, 1792 * 1024) + srd(sO, 14, 2048 * 1024) + srd(sA, 16, ACT_BYTES)
    o += [I(f's_cmp_eq_u32 s{sKG}, 0'), I(f's_cselect_b32 s{sWa}, s6, s12'), I(f's_cselect_b32 s{sWa+1}, s7, s13'),
          I(f's_mov_b32 s3, {512*1024:#x}'), I(f's_cselect_b32 s{sWa+2}, s3, s{sWb+2}'), I(f's_mov_b32 s{sWa+3}, 0x20000')]
    NS = 18
    def loads(j):
        if j >= NS: return []
        g = []
        sr = sWa if j < 16 else sWb
        pre = [I(f's_mov_b32 s{sWo}, s{sWo2}')] if j == 16 else []
        g.append(pre + dma(Wd0, sr, sWo, 0, sLW, (j % D) * 16384, f'W{j}'))
        g.append(dma(Wd1, sr, sWo, 0, sLW, (j % D) * 16384 + 1024, f'W{j}') + [I(f's_add_u32 s{sWo}, s{sWo}, 0x8000')])
        for u in range(2):
            off = (j & 1) * 2048 + u * 1024
            g.append([I(f'buffer_load_dwordx4 {v(af[j % D][u],4)}, v{L16}, s[{sA}:{sA+3}], s{sAo} offen' + (f' offset:{off}' if off else ''))])
        if j & 1: g[-1].append(I(f's_add_u32 s{sAo}, s{sAo}, 4096'))
        return g
    def reads(j):
        slot = j % D; r = []
        for u in range(2):
            for nt in range(2):
                for rho in range(2):
                    r.append(I(f'ds_read_b64_tr_b16 {v(wf[j&1][u][nt] + 2*rho, 2)}, v{wr[slot // 4][nt]} offset:{(slot % 4)*16384 + u*2048 + rho*512}'))
        return r
    for j in range(D - 1):
        for g in loads(j): o += g
    o += [I(f'buffer_load_dwordx4 {v(xv,4)}, v{xo}, s[{sXx}:{sXx+3}], 0 offen')]
    o += [I(f'v_lshrrev_b32 v{t0}, 5, v{L}'), I(f'v_lshlrev_b32 v{t0}, 10, v{t0}'), I(f'v_bfe_u32 v{t1}, v{L}, 2, 2'), I(f'v_lshl_add_u32 v{t0}, v{t1}, 7, v{t0}'),
          I(f'v_bfe_u32 v{t1}, v{L}, 3, 1'), I(f'v_lshl_add_u32 v{t0}, v{t1}, 6, v{t0}'), I(f'v_bfe_u32 v{t1}, v{L}, 4, 1'), I(f'v_lshl_add_u32 v{t0}, v{t1}, 5, v{t0}'),
          I(f'v_and_b32 v{t1}, 3, v{L}'), I(f'v_lshl_add_u32 v{t0}, v{t1}, 3, v{t0}'), I(f's_lshl_b32 s3, s{sKG}, 12'),
          I(f'v_add_u32 v{wr[0][0]}, s3, v{t0}'), I(f'v_xor_b32 v{wr[0][1]}, 64, v{wr[0][0]}'),
          I(f'v_add_u32 v{wr[1][0]}, 0x10000, v{wr[0][0]}'), I(f'v_add_u32 v{wr[1][1]}, 0x10000, v{wr[0][1]}')]
    o += [waitvm('W0'), I('s_barrier')] + stamp(1) + reads(0)
    for j in range(NS):
        o += [waitlgkm0(), waitvm(f'W{j+1}'), I('s_barrier')]
        if j in (0, 9): o += stamp(2 if j == 0 else 3)
        a = acc[1 if j >= 16 else 0]; m = []
        for u in range(2):
            for nt in range(2):
                first = u == 0 and j in (0, 16)
                m.append(I(f'v_mfma_f32_32x32x16_bf16 {v(a[nt],16)}, {v(wf[j&1][u][nt],4)}, {v(af[j % D][u],4)}, ' + ('0' if first else v(a[nt],16))))
        rd = reads(j + 1) if j + 1 < NS else []
        ld = loads(j + D - 1)
        o += rd[:2]
        for k in range(4):
            o += [m[k]] + rd[2 + 2*k: 4 + 2*k] + (ld[k] if ld else [])
    o += stamp(4)
    wa, ra, rb2 = t0, t1, t2
    o += [I(f'v_and_b32 v{wa}, 31, v{L}'), I(f's_lshl_b32 s3, s{sTH}, 5'), I(f'v_add_u32 v{wa}, s3, v{wa}'), I(f'v_mul_u32_u24 v{wa}, 272, v{wa}'),
          I(f'v_lshrrev_b32 v{ra}, 5, v{L}'), I(f'v_lshl_add_u32 v{wa}, v{ra}, 4, v{wa}'), I(f's_mul_i32 s3, s{sKG}, 17408'), I(f'v_add_u32 v{wa}, s3, v{wa}'),
          I(f'v_lshrrev_b32 v{ra}, 3, v0'), I(f'v_mul_u32_u24 v{ra}, 272, v{ra}'), I(f'v_and_b32 v{rb2}, 7, v0'), I(f'v_lshl_add_u32 v{ra}, v{rb2}, 5, v{ra}'),
          I(f'v_add_u32 v{rb2}, {4*17408}, v{ra}'), I(f'v_add_u32 v{Wd0}, {4*17408}, v{wa}'), I('s_nop 7'),
          I(f's_cmp_eq_u32 s{sKG}, 0'), I('s_cbranch_scc0 k2_add')]
    for nt in range(2):
        for j in range(4): o.append(I(f'ds_write_b128 v{Wd0}, {v(acc[1][nt] + 4*j, 4)} offset:{nt*128 + j*32}'))
    o += [I('s_branch k2_wr'), I('k2_add:')]
    for nt in range(2):
        for r in range(16): o.append(I(f'v_add_f32 v{acc[0][nt]+r}, v{acc[0][nt]+r}, v{acc[1][nt]+r}'))
    o += [I('k2_wr:')]
    for nt in range(2):
        for j in range(4): o.append(I(f'ds_write_b128 v{wa}, {v(acc[0][nt] + 4*j, 4)} offset:{nt*128 + j*32}'))
    o += [I('s_waitcnt lgkmcnt(0)'), I('s_barrier')]
    P = [af[0][0] + 8*k for k in range(5)]
    for k in (1, 2, 3, 4, 0):
        for h in range(2):
            o.append(I(f'ds_read_b128 {v(P[k] + 4*h, 4)}, v{ra if k < 4 else rb2} offset:{(k*17408 if k < 4 else 0) + 16*h}'))
    f = P[1]; T = P[2]
    for r in range(8): o.append(I(f'v_add_f32 v{f+r}, v{f+r}, v{P[2]+r}'))
    for r in range(8): o.append(I(f'v_add_f32 v{P[3]+r}, v{P[3]+r}, v{P[4]+r}'))
    for r in range(8): o.append(I(f'v_add_f32 v{f+r}, v{f+r}, v{P[3]+r}'))
    for r in range(8): o.append(I(f'v_mul_f32 v{T+r}, {LOG2E | 0x80000000:#x}, v{f+r}'))
    for r in range(8): o.append(I(f'v_exp_f32 v{T+r}, v{T+r}'))
    for r in range(8): o.append(I(f'v_mul_f32 v{f+r}, v{f+r}, v{P[0]+r}'))
    for r in range(8): o.append(I(f'v_add_f32 v{T+r}, 1.0, v{T+r}'))
    for r in range(8): o.append(I(f'v_rcp_f32 v{T+r}, v{T+r}'))
    X = P[3]
    for d in range(4): o += [I(f'v_lshlrev_b32 v{X+2*d}, 16, v{xv+d}'), I(f'v_and_b32 v{X+2*d+1}, 0xffff0000, v{xv+d}')]
    for r in range(8): o.append(I(f'v_fmac_f32 v{X+r}, v{f+r}, v{T+r}'))
    for d in range(4): o.append(I(f'v_cvt_pk_bf16_f32 v{xv+d}, v{X+2*d}, v{X+2*d+1}'))
    o += [I(f'buffer_store_dwordx4 {v(xv,4)}, v{xo}, s[{sO}:{sO+3}], 0 offen')]
    o += stamp(5)
    if STAMP: o += [I('s_waitcnt vmcnt(0)')] + stamp(6) + cstamp(9) + stamp_out(10, 16, sW, 1, P[0])
    o += [I('k2_exit:'), I('s_endpgm')]
    return text(finalize(o)), A.hi

def main():
    k1, h1 = gen_k1(); k2, h2 = gen_k2()
    extra = int(sys.argv[sys.argv.index('--empty') + 1]) if '--empty' in sys.argv else 0
    hdr = open('cdna_kernels/' + NAME + '.s.ref').read().split('; Override launch')[0]
    s_ = hdr + '; @launch kernel=k1_kernel grid=(256,1,1) block=(512,1,1) lds=163840\n'
    for _ in range(extra): s_ += '; @launch kernel=nop_kernel grid=(256,1,1) block=(512,1,1) lds=0\n'
    s_ += '; @launch kernel=k2_kernel grid=(256,1,1) block=(512,1,1) lds=131072\n'
    s_ += '.amdgcn_target "amdgcn-amd-amdhsa--gfx950"\n.text\n'
    for n, b in (('k1_kernel', k1), ('k2_kernel', k2)) + ((('nop_kernel', '  s_endpgm\n'),) if extra else ()):
        s_ += f'.globl {n}\n.p2align 8\n.type {n},@function\n{n}:\n{b}'
    s_ += '.fill 16384, 4, 0xbf800000\n'
    s_ += kd('k1_kernel', max(h1, 136)) + kd('k2_kernel', max(h2, 136)) + (kd('nop_kernel', 8) if extra else '')
    out = sys.argv[sys.argv.index('-o') + 1] if '-o' in sys.argv else 'cdna_kernels/' + NAME + '.s'
    open(out, 'w').write(s_)
    print('vgprs', h1, h2, 'bytes', len(s_), file=sys.stderr)
main()
```

```python
import re

REG = re.compile(r'^(-|abs\()?([vas])(?:(\d+)|\[(\d+):(\d+)\])\)?$')

def regs(op):
    op = op.strip()
    if op in ('vcc',): return {('s', 106), ('s', 107)}
    if op == 'vcc_lo': return {('s', 106)}
    if op == 'vcc_hi': return {('s', 107)}
    if op == 'm0': return {('s', 124)}
    if op == 'exec': return {('s', 126), ('s', 127)}
    m = REG.match(op)
    if not m: return set()
    k = m.group(2)
    if m.group(3) is not None: return {(k, int(m.group(3)))}
    return {(k, i) for i in range(int(m.group(4)), int(m.group(5)) + 1)}

TRANS = ('v_exp_f32', 'v_log_f32', 'v_rcp_f32', 'v_rsq_f32', 'v_sqrt_f32', 'v_sin_f32', 'v_cos_f32')

class Ins:
    __slots__ = ('text', 'mn', 'ops', 'kind', 'dst', 'src', 'tag', 'passes', 'srcc', 'srcab', 'data')
    def __init__(self, text, tag=None):
        self.text = text; self.tag = tag
        assert not re.search(r'v_pk_.*op_sel:\[\d,1', text), text
        t = text.split(';')[0].strip()
        p = t.split(None, 1)
        self.mn = mn = p[0]
        rest = p[1] if len(p) > 1 else ''
        ops = [o.strip() for o in rest.split(',')] if rest else []
        ops2 = []
        for o in ops:
            ops2.append(o.split()[0] if o.split() else o)
        self.ops = ops2
        R = [regs(o) for o in ops2]
        U = lambda l: set().union(*l) if l else set()
        self.passes = 0; self.srcc = set(); self.srcab = set(); self.data = set()
        lds = bool(re.search(r'\blds\b', rest)) or 'load_lds' in mn
        if mn == 'RAW':
            self.kind = 'sym'; self.dst = set(); self.src = set(); self.text = rest
        elif mn.endswith(':') or mn.startswith('.'):
            self.kind = 'label'; self.dst = set(); self.src = set()
        elif mn.startswith('v_mfma') or mn.startswith('v_smfmac'):
            self.kind = 'mfma'; self.dst = R[0]
            self.passes = 8 if '32x32' in mn else 4
            if mn.startswith('v_smfmac'):
                self.srcc = R[0]; self.srcab = U(R[1:])
            else:
                self.srcc = R[3]; self.srcab = R[1] | R[2]
            self.src = self.srcc | self.srcab
        elif mn.startswith('v_'):
            self.kind = 'valu'
            if mn.startswith('v_permlane') or mn.startswith('v_swap'):
                self.dst = R[0] | R[1]; self.src = R[0] | R[1]
            elif mn.startswith(('v_fmac', 'v_dot2c', 'v_writelane')):
                self.dst = R[0]; self.src = U(R)
            elif mn.startswith(('v_add_co', 'v_addc_co', 'v_sub_co', 'v_subb_co', 'v_mad_u64')):
                self.dst = R[0] | R[1]; self.src = U(R[2:])
            else:
                self.dst = R[0]; self.src = U(R[1:])
        elif mn.startswith('ds_'):
            self.kind = 'ds'
            if 'read' in mn or 'permute' in mn or 'swizzle' in mn or '_rtn' in mn:
                self.dst = R[0]; self.src = U(R[1:])
            else:
                self.dst = set(); self.src = U(R)
        elif mn.startswith(('buffer_', 'global_')):
            self.kind = 'vmem'
            if mn in ('buffer_wbl2', 'buffer_inv'):
                self.dst = set(); self.src = set()
            elif lds:
                self.dst = set(); self.src = U(R) | {('s', 124)}
            elif 'load' in mn:
                self.dst = R[0]; self.src = U(R[1:])
            elif 'atomic' in mn and re.search(r'\bsc0\b', rest):
                self.dst = R[0]; self.src = U(R) if mn.startswith('buffer') else U(R[1:])
            else:
                self.dst = set(); self.src = U(R)
                if 'x4' in mn or 'x3' in mn:
                    self.data = R[0] if mn.startswith('buffer') else R[1]
        elif mn.startswith(('s_load', 's_buffer_load', 's_memtime', 's_memrealtime')):
            self.kind = 'smem'; self.dst = R[0]; self.src = U(R[1:])
        elif mn in ('s_waitcnt', 's_nop', 's_barrier', 's_endpgm', 's_setprio', 's_sleep') or mn.startswith(('s_cbranch', 's_branch')):
            self.kind = 'ctl'; self.dst = set(); self.src = set()
        elif mn.startswith(('s_cmp', 's_bitcmp')):
            self.kind = 'salu'; self.dst = set(); self.src = U(R)
        elif mn.startswith('s_'):
            self.kind = 'salu'; self.dst = R[0]; self.src = U(R[1:])
            if 'saveexec' in mn: self.dst |= regs('exec')
            if mn.startswith(('s_addk', 's_mulk')): self.src |= R[0]
        elif mn in ('WAITVM', 'WAITLGKM', 'FENCE'):
            self.kind = 'sym'; self.dst = set(); self.src = set()
        else:
            raise ValueError('unknown instr: ' + text)

def I(text, tag=None): return Ins(text, tag)
def waitvm(*tags):
    i = Ins('WAITVM'); i.tag = tags; return i
def waitlgkm0():
    return Ins('WAITLGKM')
def waitreg(r, n=1):
    i = Ins('FENCE'); i.src = {('v', k) for k in range(r, r + n)}; return i

def need_states(p, c):
    n = 0
    vd = {r for r in p.dst if r[0] != 's'}
    sd = {r for r in p.dst if r[0] == 's'}
    if p.kind == 'valu':
        if c.kind == 'mfma' and vd & c.src: n = max(n, 2)
        if c.kind == 'valu':
            if p.mn.startswith(TRANS) and vd & c.src: n = max(n, 1)
            if c.mn.startswith('v_permlane') and vd & c.src: n = max(n, 2)
            if '_dpp' in c.mn and vd & c.src: n = max(n, 2)
            if c.mn.startswith(('v_readlane', 'v_readfirstlane')) and vd & c.src: n = max(n, 1)
            if ('_sdwa' in p.mn or ('op_sel' in p.text and not p.mn.startswith('v_pk_'))) and vd & (c.src | c.dst): n = max(n, 1)
            if sd & c.src: n = max(n, 4 if 'lane' in c.mn else 2)
            if p.mn.startswith('v_dot') and vd & (c.src | c.dst) and c.mn != p.mn: n = max(n, 3)
        if c.kind == 'vmem' and sd & c.src: n = max(n, 5)
        if c.kind in ('salu', 'smem') and sd & c.src: n = max(n, 1)
    if p.kind == 'mfma':
        big = p.passes == 8
        if c.kind == 'mfma':
            if p.dst & c.srcc and not (p.dst == c.srcc and p.passes == c.passes): n = max(n, 10 if big else 6)
            if p.dst & c.srcab: n = max(n, 12 if big else 8)
            if p.dst & c.dst and not (p.dst & c.srcc): n = max(n, 10 if big else 6)
        elif c.kind in ('valu', 'ds', 'vmem'):
            if p.dst & (c.src | c.dst): n = max(n, 12 if big else 8)
            if c.kind == 'valu' and p.srcc & c.dst: n = max(n, 7 if big else 3)
    if p.kind == 'salu' and ('s', 124) in p.dst and c.kind == 'vmem' and ('s', 124) in c.src: n = max(n, 1)
    if p.kind == 'vmem' and p.data and p.data & c.dst: n = max(n, 2 if c.kind in ('valu', 'mfma') else 1)
    return n

def states(i):
    if i.mn == 's_nop': return int(i.ops[0]) + 1
    if i.kind in ('label', 'sym'): return 0
    return 1

def finalize(stream, name=''):
    out = []
    vm = []
    lg = []
    def emit_wait(nv=None, nl=None):
        parts = []
        if nv is not None:
            nv = min(nv, 63); parts.append(f'vmcnt({nv})'); del vm[:max(0, len(vm) - nv)]
        if nl is not None:
            nl = min(nl, 14); parts.append(f'lgkmcnt({nl})'); del lg[:max(0, len(lg) - nl)]
        if out and out[-1].mn == 's_waitcnt':
            prev = dict(re.findall(r'(vmcnt|lgkmcnt)\((\d+)\)', out[-1].text))
            cur = dict(re.findall(r'(vmcnt|lgkmcnt)\((\d+)\)', ' '.join(parts)))
            for k, v in cur.items(): prev[k] = str(min(int(v), int(prev.get(k, 99))))
            out[-1] = Ins('s_waitcnt ' + ' '.join(f'{k}({v})' for k, v in prev.items()))
        else:
            out.append(Ins('s_waitcnt ' + ' '.join(parts)))
    waited = set()
    for ins in stream:
        if ins.kind == 'vmem' and ins.tag is not None: assert ins.tag not in waited, f'{ins.tag} issued after its wait'
        if ins.mn == 'WAITVM':
            waited |= set(ins.tag)
            idx = [k for k, (t, _) in enumerate(vm) if t in ins.tag or 'ALL' in ins.tag]
            if idx: emit_wait(nv=len(vm) - 1 - max(idx))
            continue
        if ins.mn == 'WAITLGKM':
            if lg: emit_wait(nl=0)
            continue
        if ins.mn == 's_waitcnt':
            d = dict(re.findall(r'(vmcnt|lgkmcnt)\((\d+)\)', ins.text))
            emit_wait(nv=int(d['vmcnt']) if 'vmcnt' in d else None, nl=int(d['lgkmcnt']) if 'lgkmcnt' in d else None)
            continue
        touch = ins.src | ins.dst
        nv = nl = None
        idx = [k for k, (_, d) in enumerate(vm) if d & touch]
        if idx and not (ins.kind == 'vmem' and not (ins.src & set().union(*[vm[k][1] for k in idx]))):
            nv = len(vm) - 1 - max(idx)
        idx = [k for k, (_, d) in enumerate(lg) if d & touch]
        if idx:
            nl = len(lg) - 1 - max(idx)
            if any(k == 'smem' for k, _ in lg): nl = 0
        if nv is not None or nl is not None: emit_wait(nv, nl)
        if ins.mn == 'FENCE': continue
        dist = 0; need = 0
        for p in reversed(out):
            if dist >= 20: break
            n = need_states(p, ins)
            if n > dist: need = max(need, n - dist)
            dist += states(p)
        while need > 0:
            k = min(need, 16); out.append(Ins(f's_nop {k - 1}')); need -= k
        out.append(ins)
        if ins.kind == 'vmem': vm.append((ins.tag, ins.dst))
        elif ins.kind == 'ds': lg.append(('ds', ins.dst))
        elif ins.kind == 'smem': lg.append(('smem', ins.dst))
        assert len(vm) <= 63 or True
    return out

def text(stream):
    return ''.join((i.text if i.kind == 'label' else '  ' + i.text) + '\n' for i in stream)

def interleave(main, fill, start=0, end=None):
    end = len(main) if end is None else end
    n = end - start
    out = []
    k = 0
    for j, m in enumerate(main):
        out.append(m)
        if start <= j < end:
            upto = (len(fill) * (j - start + 1) + n - 1) // n
            while k < upto:
                f = fill[k]; k += 1
                out.extend(f if isinstance(f, list) else [f])
    while k < len(fill):
        f = fill[k]; k += 1
        out.extend(f if isinstance(f, list) else [f])
    return out

class Alloc:
    def __init__(self, start, limit): self.n = start; self.limit = limit; self.hi = start
    def __call__(self, cnt=1, align=1):
        if cnt > 1 and align == 1: align = 2
        self.n = (self.n + align - 1) // align * align
        r = self.n; self.n += cnt; self.hi = max(self.hi, self.n)
        assert self.n <= self.limit, f'out of registers {self.n}'
        return r

def v(r, n=1): return f'v{r}' if n == 1 else f'v[{r}:{r + n - 1}]'
def s(r, n=1): return f's{r}' if n == 1 else f's[{r}:{r + n - 1}]'

import subprocess
_size = {}
def sizes(lines):
    todo = sorted({l for l in lines if l not in _size})
    simple = [l for l in todo if not l.split()[0].startswith(('s_cbranch', 's_branch'))]
    for l in todo:
        if l not in simple: _size[l] = 4
    if simple:
        r = subprocess.run(['llvm-mc', '-triple', 'amdgcn-amd-amdhsa', '-mcpu=gfx950', '-show-encoding'],
                           input='\n'.join(simple) + '\n', capture_output=True, text=True)
        enc = re.findall(r'encoding: \[(.*?)\]', r.stdout)
        assert len(enc) == len(simple), r.stderr[:500]
        for l, e in zip(simple, enc): _size[l] = len(e.split(','))
    return [_size[l] for l in lines]

PROMOTE = ('v_exp_f32', 'v_rcp_f32', 'v_mov_b32', 'v_max_f32', 'v_and_b32', 'v_or_b32', 'v_xor_b32', 'v_add_f32', 'v_mul_f32', 'v_add_u32', 'v_sub_u32',
           'v_lshlrev_b32', 'v_lshrrev_b32', 'v_ashrrev_i32', 'v_not_b32', 'v_sqrt_f32', 'v_subrev_u32', 'v_permlane16_swap_b32', 'v_permlane32_swap_b32')
def align8(stream):
    idx = [k for k, i in enumerate(stream) if i.kind != 'label']
    sz = dict(zip(idx, sizes([stream[k].text for k in idx])))
    off = 0; run = []
    for k in idx:
        if sz[k] == 4: run.append(k); off += 4; continue
        if off % 8:
            c = [j for j in run if stream[j].mn in PROMOTE and stream[j].kind == 'valu']
            if c:
                j = c[-1]; stream[j].text = stream[j].text.replace(stream[j].mn, stream[j].mn + '_e64', 1); off += 4
        run = []; off += sz[k]
    return stream
```

```python
import sys, copy
from asmlib import *

def opt(name, default):
    return type(default)(sys.argv[sys.argv.index(name) + 1]) if name in sys.argv else default
def optl(name, default): return [int(x) for x in opt(name, default).split(',')]
STAMP = '--stamp' in sys.argv
NAME = 'recurrent_scan__sliding_local_dilated__swiglu_ffn__prompt'
LOG2E = 0x3fb8aa3b
ACT_BYTES = 64 * 144 * 1024
FLAG_OFF = ACT_BYTES
STAT_OFF = FLAG_OFF + 131072
CPY_OFF = STAT_OFF + 32768
WS_BYTES = CPY_OFF + 2304 * 128
STAMP_OFF = 16 << 20
QUOTA = [optl('--q0', '5,3,3,3,3,3,3,4'), optl('--q1', '7,4,5,5,5,5,5,6')]
PI = optl('--pi', '-1,2,5,8')
PB = [1] + optl('--pb', '3,6') + [8]
EXM = opt('--exm', 8)
ATN = opt('--atn', 2); STI = opt('--sti', 13)
AT0 = opt('--at0', 4)
CHK = opt('--chk', 10)
CPY = opt('--cpy', 3)
CPI = optl('--cpi', '0,2')
NRD = optl('--nrd', '0,3')
NES = {'A': optl('--nea', '0,9'), 'B': optl('--neb', '0,9')}
SKS = {'A': optl('--ska', '3,0'), 'B': optl('--skb', '3,0')}
NAS = optl('--na', '8,6'); LAS = optl('--la1', '6,6')
RK = optl('--rk', '9,9'); NM = opt('--nm', 6)
P2PRIO = optl('--pp', '0,1'); LPRIO = optl('--lp', '1,2'); EPRIO = optl('--ep', '3,2')
PFPOS = opt('--pfpos', 2); SBI = [optl('--sb0', '2'), optl('--sb1', '2')]; W0 = optl('--w0', '10,0'); W1 = optl('--w1', '100,100'); FINP = opt('--finp', 9)
THRS = {'A': opt('--thra', 8), 'B': opt('--thrb', 7)}
THR0 = opt('--thr0', 0); FAST = opt('--fast', 0); FP = opt('--fp', 60)
DIAG = int(opt('--diag', '0'), 16)
ROTC = int(opt('--rotc', 'ff'), 16)
KP = optl('--kp', '0,1,2,3,4,5,6,7'); GX = opt('--gx', 2); TOKL = opt('--tokl', 1)
OUTSC = opt('--outsc', ',').replace('_', ' ').split(',')
BN = opt('--bn', 3); BS = opt('--bs', 6); D16 = opt('--d16', 4); NOR2 = optl('--nor2', '99,99')
WARM = optl('--warm', '-1,-1'); WSTR = opt('--wstr', 4096)
WSO = 0
NAP = optl('--nap', '99,0')
ROWL = opt('--rowl', 1)
I0 = opt('--i0', 3)
HONES = opt('--hones', 1)
SLEEP = opt('--sleep', 3); SPIN = 0x40000
PROBE = opt('--probe', -1)
SC = ' sc1'; OOB = 0x40000000
PTS = opt('--pts', 'entry,s0,s8,s16,epi,go0,mm,end').split(',')
def stamp(name):
    if name not in PTS or not STAMP: return []
    k = PTS.index(name)
    return [I(f's_memrealtime s[{70+2*k}:{71+2*k}]'), I(f's_memtime s[{86+2*k}:{87+2*k}]')]

XBASE, XSLOT = 6144, 18432
WBASE, WSLOT = 61440, 20480
ST4, SMO, SRO, CSO, CNT = 0, 3072, 3840, 4608, 5888
_W1 = WBASE + WSLOT
PAIR = [XBASE + 36*1024, _W1, _W1 + 2*8192, _W1 + 4*8192, XBASE, _W1 + 6*8192, _W1 + 8*8192, XBASE + 16*1024, XBASE + 52*1024]
NU = {12: 4, 13: 3, 14: 4, 15: 3, 16: 4}
KRAW, VRAW = XBASE + 16*1024, XBASE + 52*1024

sPF2, sFo, sNW, sDl, sPF1 = 0, 65, 4, 5, 6
SPLIT = [10, 9]
sDbg, sWo, sWd, sOut, sX, sA, sB, sCc, sWS = 36, 8, 16, 12, 20, 24, 28, 32, 40
pQ, pG, pU = 6, 12, 14
sW, sC, sRB, sIDX, sKa, sKg, sXo0, sXo1, sLW, sLX, sLH = range(44, 55)
sST = 55
sW2o, sSD, sHX = 60, 61, 62
sTYP, sTOK = 64, 63
sSH = sTYP
sa, sb, sc_, sd = 66, 67, 68, 69
sAr, sPoll, sL2E = sKa, 28, 56

class Regs: pass
def srd23(d, n): return [I(f's_mov_b32 s{d+2}, {n:#x}'), I(f's_mov_b32 s{d+3}, 0x20000')]
def flat(gs): return [i for g in gs for i in g]
def dma(voff, srdr, soff, ldsbase_s, ldsimm, tag, off=0):
    so = f's{soff}' if soff is not None else '0'
    return [I(f's_add_u32 m0, s{ldsbase_s}, {ldsimm - off}'),
            I(f'buffer_load_dwordx4 v{voff}, s[{srdr}:{srdr+3}], {so} offen' + (f' offset:{off}' if off else '') + ' lds', tag)]

def common():
    R = Regs()
    for k, n in enumerate('L L16 t0 t1 t2 one W2d xo av ex a4'.split()): setattr(R, n, 1 + k)
    R.wr = 12
    for k, n in enumerate('Xd Xh Va Vb Vc Xr0 Xr1 Wa Wb Ma Mb Sv s16 sg idx fs'.split()): setattr(R, n, 18 + k)
    R.ones = 34
    R.xr, R.s1, R.s2, R.u0, R.u1, R.p1, R.p2, R.at, R.junk, R.c1, R.c2, R.cv = 184, 188, 189, 190, 191, 174, 175, 176, 177, 178, 179, 192
    t0, t1, t2, u0, u1 = R.t0, R.t1, R.t2, R.u0, R.u1
    o = [I('s_cmp_ge_u32 s2, 256'), I('s_cbranch_scc1 L_exit')] + stamp('entry')
    o += [I(f's_load_dwordx2 s[{sX}:{sX+1}], s[0:1], 0'), I('s_load_dwordx16 s[4:19], s[0:1], 0'), I(f's_load_dwordx4 s[{sDbg}:{sDbg+3}], s[0:1], 64'),
          I(f'v_readfirstlane_b32 s{sW}, v0'), I(f'v_lshrrev_b32 v{t0}, 4, v0'), I(f'v_lshrrev_b32 v{u0}, 3, v0'),
          I(f's_bfe_u32 s{sa}, s2, 0x10002'), I(f's_bfe_u32 s{sb}, s2, 0x30003'), I(f's_lshl3_add_u32 s{sRB}, s{sa}, s{sb}'),
          I(f'v_bitop3_b32 v{t1}, v{t0}, v0, 7 bitop3:0x28'),
          I(f's_lshl_b32 s{sLX}, s{sW}, 4'), I(f's_lshl_b32 s{sXo0}, s{sRB}, 17'), I(f'v_lshlrev_b32 v{t1}, 4, v{t1}'),
          ] + ([I(f's_and_b32 s{sa}, s2, 3'), I(f's_lshr_b32 s{sb}, s2, 6'), I(f's_lshl2_add_u32 s{sa}, s{sa}, s{sb}'), I(f's_lshl_b32 s{sa}, s{sa}, 13'), I(f's_add_u32 s{sTOK}, s{sa}, s{sXo0}')]
               if TOKL else [I(f's_lshl_b32 s{sTOK}, s2, 13')]) + [I(f'v_lshlrev_b32 v{R.L16}, 4, v0'), I(f'v_lshl_add_u32 v{R.Xd}, v{u0}, 10, v{t1}')] + srd23(sX, 2048 * 1024)
    o += [I(f's_getpc_b64 s[{sa}:{sa+1}]'), I(f's_lshr_b32 s{sc_}, s2, 3'), I(f's_lshl_b32 s{sc_}, s{sc_}, 4'), I(f'v_lshrrev_b32 v{t2}, 5, v0'),
          I(f'v_add_lshl_u32 v{t1}, v{t2}, s{sc_}, 7'), I(f'global_load_dword v{R.junk}, v{t1}, s[{sa}:{sa+1}]', 'pf'),
          I(f's_add_u32 s{sXo1}, s{sXo0}, 0x10000'), I(f's_add_u32 m0, s{sLX}, {XBASE + 2048}'), I('s_waitcnt lgkmcnt(0)')] + stamp('karg')
    row = [I(f'buffer_load_dwordx4 {v(R.xr,4)}, v{R.L16}, s[{sX}:{sX+3}], s{sTOK} offen', 'row')]
    if not ROWL: o += row
    o += dma(R.Xd, sX, sXo0, sLX, XBASE + 2048, 'X0')[1:] + dma(R.Xd, sX, sXo1, sLX, XBASE + 2048 + 8192, 'X0')
    pa, pb, ca, cb, cc_ = sST, sST + 1, sST + 2, sST + 3, sST + 4
    o += [I(f'v_and_b32 v{t0}, 4, v{t0}'), I(f's_lshr_b32 s{sW}, s{sW}, 6'), I(f'v_and_or_b32 v{t0}, v{u0}, 2, v{t0}'),
          I(f's_and_b32 s{sa}, s2, 3'), I(f's_lshr_b32 s{sb}, s2, 7'), I(f's_lshl1_add_u32 s{sIDX}, s{sa}, s{sb}'),
          I(f'v_bitop3_b32 v{t0}, v{t0}, v0, 7 bitop3:0x28'), I(f's_and_b32 s{sC}, s{sW}, 3'), I(f's_lshl_b32 s{sLW}, s{sC}, 10'),
          I(f'v_lshlrev_b32 v{t0}, 4, v{t0}'), I(f'v_and_b32 v{u1}, 31, v{u0}'),
          I(f's_mov_b32 s{sA+3}, 0x20000'), I(f's_mov_b32 s{sB+3}, 0x20000'), I(f's_movk_i32 s{sc_}, 3584'), I(f's_lshr_b32 s{sLH}, s{sW}, 2'),
          I('s_bitcmp1_b32 s2, 6'), I('s_cbranch_scc1 L_pB'),
          I(f's_movk_i32 s{pa}, 3072'), I(f's_lshl_b32 s{sa}, s{sIDX}, 7'), I(f's_xor_b32 s{cc_}, s{sa}, {GX * 128}'), I(f's_add_u32 s{cc_}, s{cc_}, 2560'), I(f's_add_u32 s{cb}, s{sa}, 1024'),
          I(f's_lshl_b32 s{sb}, s{sLH}, 11'), I(f's_add_u32 s{ca}, s{sa}, s{sb}'),
          I(f's_cmp_eq_u32 s{sLH}, 0'), I(f's_cselect_b32 s{pb}, s{pa}, s{sc_}'), I(f's_cselect_b32 s{cb}, s{cb}, s{cc_}'),
          I(f's_cselect_b64 s[{sB}:{sB+1}], s[{pQ}:{pQ+1}], s[{pG}:{pG+1}]'), I(f's_mov_b64 s[{sA}:{sA+1}], s[{pQ}:{pQ+1}]'),
          I('s_branch L_pJ'),
          I('L_pB:'),
          I(f's_mov_b32 s{pa}, s{sc_}'), I(f's_mov_b32 s{pb}, s{sc_}'), I(f's_mul_i32 s{sa}, s{sIDX}, 320'),
          I(f's_bitcmp1_b32 s{sIDX}, 0'), I(f's_cselect_b32 s{ca}, 64, 0'), I(f's_cselect_b32 s{cc_}, 0, 256'),
          I(f's_add_u32 s{ca}, s{ca}, s{sa}'), I(f's_add_u32 s{cc_}, s{cc_}, s{sa}'), I(f's_add_u32 s{cb}, s{ca}, 128'),
          I(f's_cmp_eq_u32 s{sLH}, 0'),
          I(f's_cselect_b64 s[{sA}:{sA+1}], s[{pG}:{pG+1}], s[{pU}:{pU+1}]'), I(f's_cselect_b64 s[{sB}:{sB+1}], s[{pG}:{pG+1}], s[{pU}:{pU+1}]'),
          I('L_pJ:'),
          I(f'v_mad_u32_u24 v{R.Va}, v{u1}, s{pa}, v{t0}'), I(f'v_mad_u32_u24 v{R.Vb}, v{u1}, s{pb}, v{t0}'),
          I(f's_lshl_b32 s{sA+2}, s{pa}, 9'), I(f's_lshl_b32 s{sB+2}, s{pb}, 9'), I(f's_lshl_b32 s{sa}, s{sLH}, 13'), I(f's_add_u32 s{sa}, s{sa}, s{sLW}')]
    o += dma(R.Va, sA, ca, sa, WBASE, 'W0') + dma(R.Vb, sB, cb, sa, WBASE + 4096, 'W0') + (row if ROWL else [])
    o += [I(f'v_add_u32 v{R.Va}, s{ca}, v{R.Va}'), I(f'v_add_u32 v{R.Vb}, s{cb}, v{R.Vb}'), I(f'v_and_b32 v{R.L}, 63, v0')] + stamp('dma0')
    o += [I('s_bitcmp1_b32 s2, 6'), I('s_cbranch_scc1 L_B'), I(f's_cmp_eq_u32 s{sLH}, 0'), I('s_cbranch_scc0 L_A1'), I('s_branch L_A0'),
          I('L_B:'), I(f's_cmp_eq_u32 s{sLH}, 0'), I('s_cbranch_scc0 L_B1'), I('s_branch L_B0'),
          I('L_exit:'), I('s_endpgm')]
    return R, o

def halo_dma(R, S):
    g = dma(R.Xh, sX, None, sLH, XBASE + (S % 3) * XSLOT, f'X{S}', KP[S] * 128)
    return [g[0], I(f's_mov_b32 exec_lo, s{sHX}'), I('s_mov_b32 exec_hi, 0'), g[1], I('s_mov_b64 exec, -1')]

def first_loads(R, typ, th):
    if th == 0: return []
    L, t0, t1, t2, u0, u1, cc_ = R.L, R.t0, R.t1, R.t2, R.u0, R.u1, sST + 4
    o = srd23(sCc, 512 * 3584)
    if typ == 'A':
        o += [I(f's_mov_b64 s[{sCc}:{sCc+1}], s[{pU}:{pU+1}]')] + dma(R.Vb, sCc, None, sLW, WBASE + 16384, 'W0')
        o += [I(f'v_lshrrev_b32 v{t0}, 3, v{L}'), I(f's_lshl_b32 s{sa}, s{sC}, 2'), I(f'v_add_u32 v{t0}, s{sa}, v{t0}'),
              I(f'v_lshrrev_b32 v{t1}, 1, v{t0}'), I(f'v_bitop3_b32 v{t1}, v{t1}, v{L}, 7 bitop3:0x28'), I(f'v_lshlrev_b32 v{t1}, 4, v{t1}'),
              I(f'v_lshl_add_u32 v{t0}, v{t0}, 10, v{t1}'), I(f's_sub_u32 s{sb}, s{sXo0}, 0x4000'), I(f's_cselect_b32 s{sb}, {OOB}, s{sb}'),
              I(f'v_add_u32 v{R.Xh}, s{sb}, v{t0}'), I(f's_lshl_b32 s{sLH}, s{sC}, 9'),
              I(f's_cmp_eq_u32 s{sC}, 0'), I(f's_cselect_b32 s{sHX}, {0xffffff00 if HONES else -1}, -1'), ] + halo_dma(R, 0)
    else:
        o += [I(f'v_bitop3_b32 v{t2}, v{t2}, v0, 3 bitop3:0x28'), I(f'v_lshl_add_u32 v{t2}, v{t2}, 4, s{cc_}'),
              I(f'v_bfe_u32 v{t1}, v0, 2, 4'), I(f'v_and_or_b32 v{t1}, v{u0}, 16, v{t1}'), I(f'v_mad_u32_u24 v{R.Vc}, v{t1}, s{sc_}, v{t2}'),
              I(f's_bitcmp1_b32 s{sC}, 0'), I(f's_cselect_b64 s[{sCc}:{sCc+1}], s[{pU}:{pU+1}], s[{pG}:{pG+1}]')] + dma(R.Vc, sCc, None, sLW, WBASE + 16384, 'W0')
    return o

def pf_mine(typ, th, k): return PI[k] < 99 and (th == k & 1 or (typ == 'A' and EXM >> k & 1))
def pf_load(R, typ, th, k):
    base = sPF2 if k == 3 else sPF1
    ld = f'global_load_dword v{R.junk}, v{208 + k}, s[{base}:{base+1}]'
    if typ == 'A' and EXM >> k & 1: return [I('s_bitcmp1_b32 s2, 7'), I(f's_cbranch_scc1 L_A{th}p{k}'), I('RAW ' + ld), I(f'L_A{th}p{k}:')]
    return [I(ld)]
def pf_offset(R, typ, th, k):
    if not pf_mine(typ, th, k): return []
    L, d, t0 = R.L, 208 + k, R.t0
    o = [I(f's_or_b32 s{sb}, s2, {0 if th == k & 1 else 128}')]
    if k < 3:
        S0, n = PB[k], PB[k + 1] - PB[k]
        return o + [I(f's_cmp_eq_u32 s{sC}, 0'), I(f's_cselect_b32 s{sa}, 6, 7'), I(f's_mul_i32 s{sb}, s{sb}, {n}'), I(f's_add_u32 s{sb}, s{sb}, {256 * S0}'), I(f's_mul_i32 s{sb}, s{sb}, s{sa}'),
                    I(f's_mul_i32 s{sa}, s{sa}, {n}'), I(f's_sub_u32 s{sa}, s{sa}, 1'), I(f's_cmp_eq_u32 s{sC}, 3'), I(f's_cselect_b32 s{sa}, 0, s{sa}'),
                    I(f'v_min_u32 v{d}, s{sa}, v{L}'), I(f'v_add_lshl_u32 v{d}, v{d}, s{sb}, 7')]
    return o + [I(f's_sub_u32 s{sd}, s{sC}, 1'), I(f's_cselect_b64 s[{sPF2}:{sPF2+1}], s[{sWo}:{sWo+1}], s[{sWd}:{sWd+1}]'),
                I(f's_cselect_b32 s{sc_}, 16, 56'), I(f's_cselect_b32 s{sd}, 0, s{sd}'), I(f's_mul_i32 s{sd}, s{sd}, 19'),
                I(f'v_min_u32 v{d}, 18, v{L}'), I(f'v_add_u32 v{d}, s{sd}, v{d}'), I(f's_sub_u32 s{sd}, s{sc_}, 1'), I(f'v_min_u32 v{d}, s{sd}, v{d}'),
                I(f's_mul_i32 s{sc_}, s{sc_}, s{sb}'), I(f'v_and_b32 v{t0}, 7, v{d}'), I(f'v_cmp_eq_u32 vcc, {CPY}, v{t0}'), I(f'v_add_lshl_u32 v{d}, v{d}, s{sc_}, 7'),
                I(f'v_xor_b32 v{t0}, 128, v{d}'), I(f'v_cndmask_b32 v{d}, v{d}, v{t0}, vcc')]

def setup_a(R, typ, th):
    L, t0, t1, t2, u0, u1 = R.L, R.t0, R.t1, R.t2, R.u0, R.u1
    o = [I(f's_mov_b32 s{sKa}, 0'), I(f's_mov_b32 s{sKg}, 0'), I(f'v_lshlrev_b32 v{R.L16}, 4, v{L}'),
         I(f's_cmp_eq_u32 s{sC}, 0'), I(f's_cselect_b64 s[6:7], s[{pQ}:{pQ+1}], s[{pG}:{pG+1}]'),
         I(f's_cmp_eq_u32 s{sC}, 2'), I(f's_cselect_b64 s[6:7], s[{pU}:{pU+1}], s[6:7]')] + pf_offset(R, typ, th, 0)
    R.na = len(o)
    o += [I(f'v_and_b32 v{R.a4}, 15, v{L}'), I(f'v_lshrrev_b32 v{t1}, 4, v{L}'), I(f'v_bfe_u32 v{u0}, v{L}, 1, 3'),
          I(f'v_xor_b32 v{u0}, v{u0}, v{t1}'), I(f'v_lshlrev_b32 v{u0}, 4, v{u0}'), I(f'v_lshl_add_u32 v{R.Xr0}, v{R.a4}, 7, v{u0}'),
          I(f'v_xor_b32 v{R.Xr1}, 64, v{R.Xr0}'),
          I(f'v_bfe_u32 v{u0}, v{L}, 3, 2'), I(f'v_xor_b32 v{u0}, s{sC}, v{u0}'), I(f'v_lshlrev_b32 v{u0}, 5, v{u0}'),
          I(f'v_lshl_add_u32 v{u0}, v{t1}, 10, v{u0}'), I(f'v_bfe_u32 v{u1}, v{L}, 2, 2'), I(f'v_lshl_add_u32 v{u0}, v{u1}, 7, v{u0}'),
          I(f'v_and_b32 v{t0}, 3, v{L}'), I(f'v_lshl_add_u32 v{u0}, v{t0}, 3, v{u0}'),
          I(f'v_add_u32 v{R.Wa}, {WBASE}, v{u0}'), I(f'v_add_u32 v{R.Wb}, {WBASE + 3*WSLOT}, v{u0}')]
    if typ == 'B':
        o += [I(f'v_bfe_u32 v{u0}, v{L}, 4, 1'), I(f'v_and_b32 v{t0}, 2, v{L}'), I(f'v_or_b32 v{t2}, v{u0}, v{t0}'),
              I(f'v_xor_b32 v{t2}, s{sC}, v{t2}'), I(f'v_lshlrev_b32 v{t2}, 4, v{t2}'),
              I(f'v_lshl_add_u32 v{t2}, v{t0}, 9, v{t2}'), I(f'v_lshl_add_u32 v{t2}, v{u0}, 9, v{t2}'),
              I(f'v_lshl_add_u32 v{t2}, v{u1}, 6, v{t2}'), I(f'v_lshrrev_b32 v{u0}, 5, v{L}'), I(f'v_lshl_add_u32 v{t2}, v{u0}, 11, v{t2}'),
              I(f'v_and_b32 v{u0}, 1, v{L}'), I(f'v_lshl_add_u32 v{t2}, v{u0}, 3, v{t2}'),
              I(f'v_add_u32 v{R.Ma}, {WBASE}, v{t2}'), I(f'v_add_u32 v{R.Mb}, {WBASE + 3*WSLOT}, v{t2}')]
    for j in range(4): o.append(I(f'v_mov_b32 v{R.ones + j}, 0x3f803f80'))
    if typ == 'A' and th == 1 and HONES:
        o += [I(f'v_and_b32 v{t0}, 0x70, v{R.L16}')] + [I(f'ds_write_b128 v{t0}, {v(R.ones,4)} offset:{XBASE + k*XSLOT}') for k in range(3)]
    for p in R.csp:
        for j in range(4): o.append(I(f'v_mov_b32 v{R.cs[p] + j}, 0'))
    if th == 0: o += [I(f'v_bfe_i32 v{R.idx}, v{L}, 0, 1'), I(f'v_and_b32 v{R.idx}, 0xaaaaaaaa, v{R.idx}'), I(f'v_or_b32 v{R.idx}, 0x44444444, v{R.idx}')]
    o += [I(f's_add_u32 s{sWS}, s{sDbg+2}, {WSO << 20}'), I(f's_addc_u32 s{sWS+1}, s{sDbg+3}, 0'), I(f's_mov_b64 s[{sOut}:{sOut+1}], s[18:19]')]
    o += srd23(sWS, WS_BYTES) + srd23(sDbg, 256) + srd23(sWo, 512 * 1024) + srd23(sWd, 1792 * 1024) + srd23(sOut, 2048 * 1024)
    return o

def setup_b(R, typ, th):
    L, L16, t0, t1, t2, wr = R.L, R.L16, R.t0, R.t1, R.t2, R.wr
    sCT, sTB = sW2o, sSD
    o = [I(f's_and_b32 s{sa}, s2, 7'), I(f's_bfe_u32 s{sb}, s2, 0x20003'), I(f's_lshl2_add_u32 s{sa}, s{sa}, s{sb}'), I(f's_lshr_b32 s{sCT}, s2, 5'),
         I(f's_and_b32 s{sb}, s{sa}, 30'), I(f's_add_u32 s{sTB}, s{sa}, s{sb}'),
         I(f's_lshl3_add_u32 s{sa}, s{sa}, s{sCT}'), I(f's_lshl_b32 s{sa}, s{sa}, 9'), I(f's_add_u32 s{sTYP}, s{sa}, {FLAG_OFF + th*256}'),
         I(f's_lshl_b32 s{sa}, s{sC}, 28'), I(f'v_lshl_add_u32 v{t0}, v{L}, 2, s{sa}'), I(f'v_mov_b32 v{R.s1}, 0'), I(f'v_mov_b32 v{R.s2}, 0'),
         I(f'buffer_store_dword v{R.s1}, v{t0}, s[{sWS}:{sWS+3}], s{sTYP} offen{SC}', 'rst'),
         I(f'ds_write_b32 v{R.s1}, v{R.s1} offset:{CNT + 4*th}')] + ([I(f'ds_write_b32 v{R.s1}, v{R.s1} offset:{CNT + 8}')] if th else [])
    if th == 1:
        o += [I(f's_bitcmp1_b32 s{sC}, 1'), I(f's_cselect_b64 s[{sWo}:{sWo+1}], s[{sWd}:{sWd+1}], s[{sWo}:{sWo+1}]'), I(f's_cselect_b32 s{sWo+2}, s{sWd+2}, s{sWo+2}'),
              I(f's_cselect_b32 s{sb}, 7, 2'), I(f's_cselect_b32 s{sDl}, 512, 0'), I(f'v_lshrrev_b32 v{t0}, 3, v{L}'), I(f'v_cmp_gt_u32 vcc, s{sb}, v{t0}'),
              I(f's_mul_i32 s{sb}, s{sb}, s2'), I(f'v_add_u32 v{t0}, s{sb}, v{t0}'), I(f'v_and_b32 v{t1}, 0x70, v{L16}'), I(f'v_lshl_add_u32 v{R.c1}, v{t0}, 10, v{t1}'),
              I(f'v_add_u32 v{t0}, s{sDl}, v{t0}'), I(f'v_lshl_add_u32 v{R.c2}, v{t0}, 7, v{t1}'), I(f's_bitcmp1_b32 s{sC}, 0'), I(f's_cselect_b64 vcc, 0, vcc'), I(f'v_mov_b32 v{t1}, {OOB}'),
              I(f'v_add_u32 v{R.c2}, {CPY_OFF}, v{R.c2}'), I(f'v_cndmask_b32 v{R.c1}, v{t1}, v{R.c1}, vcc'), I(f'v_cndmask_b32 v{R.c2}, v{t1}, v{R.c2}, vcc')]
        o += [I(f's_and_b32 s{sb}, s{sIDX}, 3'), I(f's_lshl_b32 s{sb}, s{sb}, 6'), I(f's_add_u32 s{sb}, s{sb}, 256'), I(f'v_subrev_u32 v{R.at}, s{sb}, v0'),
              I(f's_lshl_b32 s{sb}, s{sRB}, 4'), I(f'v_lshl_add_u32 v{R.at}, v{R.at}, 22, s{sb}')]
    o += [I(f'v_mov_b32 v{R.one}, 1')]
    for k in (1, 2, 3):
        if PI[k] <= max(SBI[th]): o += pf_offset(R, typ, th, k)
    early = len(o)
    for k in (1, 2, 3):
        if PI[k] > max(SBI[th]): o += pf_offset(R, typ, th, k)
    o += [I(f's_lshl_b32 s{sa}, s{sRB}, 13'), I(f's_xor_b32 s{sb}, s{sIDX}, {GX if typ == "A" else 0}'), I(f's_lshl2_add_u32 s{sa}, s{sb}, s{sa}'),
          I(f's_add_u32 s{sa}, s{sa}, {FLAG_OFF + th*128 + (260 if typ == "A" else 0)}'),
          I(f'v_lshl_add_u32 v{R.fs}, v{R.a4}, 9, s{sa}'), I(f'v_lshrrev_b32 v{t0}, 4, v{L}')]
    if typ == 'B':
        o += [I(f'v_mul_u32_u24 v{t1}, 228, v{t0}'), I(f's_cmp_eq_u32 s{sIDX}, 7'), I(f's_cselect_b32 s{sb}, 1, 0'),
              I(f'v_add_u32 v{R.fs}, v{R.fs}, v{t1}'), I(f'v_lshrrev_b32 v{t0}, s{sb}, v{t0}')]
    o += [I(f'v_lshl_add_u32 v{R.fs}, v{t0}, 28, v{R.fs}')]
    o += [I(f's_mul_i32 s{sa}, s{sRB}, {4*144*1024}')] + ([I(f's_add_u32 s{sa}, s{sa}, {2*144*1024}')] if th else [])
    if typ == 'A':
        o += [I(f's_add_u32 s{sa}, s{sa}, s{sLW}'), I(f's_lshl_b32 s{sb}, s{sIDX}, 12'), I(f's_add_u32 s{sST+2}, s{sa}, s{sb}'),
              I(f's_xor_b32 s{sb}, s{sb}, {GX * 4096}'), I(f's_add_u32 s{sST}, s{sa}, s{sb}'), I(f's_add_u32 s{sST}, s{sST}, {(32+80)*1024}')]
    else:
        o += [I(f's_mul_i32 s{sb}, s{sIDX}, {320*32}'), I(f's_add_u32 s{sa}, s{sa}, s{sb}'), I(f's_add_u32 s{sa}, s{sa}, 0x8000'),
              I(f's_bitcmp1_b32 s{sIDX}, 0'), I(f's_cselect_b32 s{sb}, 2048, 0'), I(f's_cselect_b32 s{sc_}, 0, 8192'),
              I(f's_add_u32 s{sST}, s{sa}, s{sb}'), I(f's_add_u32 s{sST}, s{sST}, s{sLW}'), I(f's_add_u32 s{sST+2}, s{sST}, 4096'),
              I(f's_add_u32 s{sa}, s{sa}, s{sc_}'), I(f's_lshl_b32 s{sb}, s{sC}, 9'), I(f's_add_u32 s{sST+4}, s{sa}, s{sb}')]
    o += [I(f's_add_u32 s{sST+1}, s{sST}, {144*1024}'), I(f's_add_u32 s{sST+3}, s{sST+2}, {144*1024}')]
    if th == 0:
        o += [I(f's_mul_i32 s{sd}, s{sC}, 19'), I(f's_add_u32 s{sc_}, s{sd}, 32'),
              I(f's_lshl_b32 s{sb}, s{sC}, 3'), I(f's_max_u32 s{sb}, s{sb}, 4'), I(f's_add_u32 s{sFo}, s{sTYP}, s{sb}'), I(f's_sub_u32 s{sFo}, s{sFo}, 4')]
    else:
        o += [I(f's_bitcmp1_b32 s{sC}, 0'), I(f's_cselect_b32 s{sb}, 16, 0'), I(f's_add_u32 s{sFo}, s{sTYP}, s{sb}'),
              I(f's_bitcmp1_b32 s{sC}, 1'), I(f's_cselect_b32 s{sNW}, 0, {OOB}'), I(f's_cselect_b32 s{sa}, 18, 16'), I(f's_cselect_b32 s{sb}, 40, 0'), I(f's_cselect_b32 s{sc_}, 32, 0'),
              I(f's_mul_i32 s{sd}, s{sC}, s{sa}'), I(f's_add_u32 s{sd}, s{sd}, s{sb}'), I(f's_add_u32 s{sc_}, s{sc_}, s{sd}')]
    o += ([I(f's_movk_i32 s{sa}, 9')] if th == 0 else [I(f's_sub_u32 s{sa}, s{sa}, 9')]) + [
          I(f's_lshr_b32 s{sb}, {ROTC}, s{sCT}'), I(f's_and_b32 s{sb}, s{sb}, s{sTB}'), I(f's_bitcmp1_b32 s{sb}, 0'), I(f's_cselect_b32 s{sa}, s{sa}, 0'), I(f's_cselect_b32 s{sb}, 0, {SPLIT[th]}'),
          I(f's_add_u32 s{sd}, s{sd}, s{sa}'), I(f's_add_u32 s{sc_}, s{sc_}, s{sa}'), I(f's_sub_u32 s{sDl}, s{sb}, s{sa}'), I(f's_lshl_b32 s{sDl}, s{sDl}, 1')]
    o += [I(f's_mul_i32 s{sa}, s{sTB}, 144'), I(f's_add_u32 s{sa}, s{sa}, s{sc_}'), I(f's_lshl_b32 s{sa}, s{sa}, 10'), I(f'v_add_u32 v{R.av}, s{sa}, v{L16}'),
          I(f'v_lshrrev_b32 v{t0}, 2, v{L}'), I(f'v_and_b32 v{t0}, 4, v{t0}'), I(f'v_bitop3_b32 v{t0}, v{t0}, v{L}, 7 bitop3:0x28'),
          I(f'v_lshlrev_b32 v{t0}, 4, v{t0}'), I(f'v_lshrrev_b32 v{t1}, 3, v{L}'),
          I(f's_lshl_b32 s{sCT}, s{sCT}, 7'), I(f's_lshl_b32 s{sd}, s{sd}, 14'), I(f's_add_u32 s{sd}, s{sd}, s{sCT}'),
          I(f's_lshl_b32 s{sc_}, s{sc_}, 11'), I(f's_add_u32 s{sc_}, s{sc_}, {CPY_OFF}'),
          I(f's_cmp_eq_u32 s{sCT}, {CPY * 128}'), I(f's_cselect_b32 s{sd}, s{sc_}, s{sd}'), I(f's_cselect_b32 s{sSH}, 10, 13'), I(f's_cselect_b32 s{sb}, 7, 10'),
          I(f'v_lshl_add_u32 v{t0}, v{t1}, s{sb}, v{t0}'), I(f'v_add_u32 v{R.W2d}, s{sd}, v{t0}'),
          I(f'v_lshrrev_b32 v{t0}, 4, v0'), I(f'v_lshlrev_b32 v{t1}, 3, v{R.a4}'), I(f'v_lshl_add_u32 v{t0}, v{t0}, 10, v{t1}'),
          I(f's_lshl_b32 s{sa}, s{sTB}, 15'), I(f's_add_u32 s{sa}, s{sa}, s{sCT}'), I(f'v_add_u32 v{R.xo}, s{sa}, v{t0}'),
          I(f'v_lshrrev_b32 v{t0}, 5, v{L}'), I(f'v_lshlrev_b32 v{t0}, 13, v{t0}'), I(f'v_bfe_u32 v{t1}, v{L}, 2, 2'), I(f'v_lshl_add_u32 v{t0}, v{t1}, 7, v{t0}'),
          I(f'v_bfe_u32 v{t1}, v{L}, 3, 1'), I(f'v_lshl_add_u32 v{t0}, v{t1}, 6, v{t0}'), I(f'v_bfe_u32 v{t1}, v{L}, 4, 1'), I(f'v_lshl_add_u32 v{t0}, v{t1}, 5, v{t0}'),
          I(f'v_and_b32 v{t1}, 3, v{L}'), I(f'v_lshl_add_u32 v{t0}, v{t1}, 3, v{t0}'),
          I(f'v_add_u32 v{wr}, s{sLX}, v{t0}'), I(f'v_xor_b32 v{wr+1}, 64, v{wr}'),
          I(f'v_add_u32 v{wr+2}, {_W1}, v{wr}'), I(f'v_add_u32 v{wr+3}, {_W1}, v{wr+1}'),
          I(f'v_add_u32 v{wr+4}, {_W1 + 65536}, v{wr}'), I(f'v_add_u32 v{wr+5}, {_W1 + 65536}, v{wr+1}')]
    if th == 1:
        o += [I(f's_lshl_b32 s{sa}, s{sRB}, 11'), I(f's_sub_u32 s{sa}, s{sa}, 256'), I(f's_cselect_b32 s{sb}, 256, 0') if typ == 'A' else I(f's_movk_i32 s{sb}, 256'),
              I(f's_add_u32 s{sa}, s{sa}, {STAT_OFF}'), I(f's_min_u32 s{sSD}, s{sLW}, 2048'), I(f'v_add_u32 v{R.Sv}, s{sSD}, v{L16}'), I(f'v_subrev_u32 v{t0}, s{sb}, v{R.Sv}'),
              I(f'v_add_u32 v{R.Sv}, s{sa}, v{R.Sv}'), I(f's_sub_u32 s{sb}, 2304, s{sb}'), I(f'v_cmp_gt_u32 vcc, s{sb}, v{t0}'), I(f'v_mov_b32 v{t1}, {OOB}'),
              I(f'v_cndmask_b32 v{R.Sv}, v{t1}, v{R.Sv}, vcc')]
    o += [I(f's_lshl_b32 s{sa}, s{sC}, 6'), I(f'v_lshlrev_b32 v{R.s16}, 4, v{R.a4}'), I(f'v_lshl_add_u32 v{t2}, v{R.a4}, 2, s{sa}'),
          I(f'v_and_b32 v{R.sg}, 0x30, v{L}'), I(f'v_add_u32 v{t0}, s{sa}, v{R.sg}')]
    if typ == 'A': o += [I(f's_lshl_b32 s{sa}, s{sC}, 9'), I(f'v_lshl_add_u32 v{R.ex}, v{L}, 3, s{sa}')]
    else: o += [I(f'v_and_b32 v{t1}, 0x200, v{L16}'), I(f'v_add_u32 v{t1}, v{t1}, v{R.s16}'),
                I(f'v_lshrrev_b32 v{R.ex}, 5, v{L}'), I(f'v_mul_u32_u24 v{R.ex}, {144*1024 - 512}, v{R.ex}'), I(f'v_add_u32 v{R.ex}, v{R.ex}, v{L16}')]
    u0, u1 = 196, 197
    o += [I(f'v_bfe_u32 v{u0}, v0, 4, 3'), I(f'v_lshrrev_b32 v{u1}, 1, v{u0}'), I(f'v_sub_u32 v{u1}, v{u1}, v{u0}'), I(f'v_and_b32 v{u0}, 1, v{u0}'),
          I(f'v_lshl_add_u32 v{u0}, v{u0}, 2, v{u1}'), I(f'v_add_u32 v{u0}, 64, v{u0}'), I(f'v_lshl_add_u32 v{R.a4}, v{u0}, 10, v{R.xo}')]
    return o[:early], o[early:]

def bf16r(d, src):
    return [I(f'v_cvt_pk_bf16_f32 v{d}, v{src}, v{src}'), I(f'v_and_b32 v{d}, 0xffff0000, v{d}')]

def row_stats(R):
    a1, a2, T, f, y = R.s1, R.s2, R.xr, R.xr, 200
    t = a2; u = R.u1
    def wave_sum(a):
        return [I(f'v_add_f32_dpp v{a}, v{a}, v{a} row_ror:{k} row_mask:0xf bank_mask:0xf') for k in (8, 4, 2, 1)] + flat(
            [I(f'v_mov_b32 v{u}, v{a}'), I(f'v_permlane{w}_swap_b32 v{a}, v{u}'), I(f'v_add_f32 v{a}, v{a}, v{u}')] for w in (16, 32)) + [I(f'v_mul_f32 v{a}, 0x3b000000, v{a}')]
    o = flat([I(f'v_lshlrev_b32 v{y+2*d}, 16, v{f+d}'), I(f'v_and_b32 v{y+2*d+1}, 0xffff0000, v{f+d}')] for d in range(4))
    o += [pk('add', T, y, y + 2), pk('add', T + 2, y + 4, y + 6), pk('add', T, T, T + 2), I(f'v_add_f32 v{a1}, v{T}, v{T+1}'),
          I(f's_add_u32 s{sTOK}, s{sTOK}, s{sLX}'), I(f's_lshr_b32 s{sTOK}, s{sTOK}, 6')] + wave_sum(a1)
    o += [pk('add', y + 2*d, y + 2*d, a1, None, 'op_sel_hi:[1,0] neg_lo:[0,1] neg_hi:[0,1]') for d in range(4)]
    o += [pk('mul', T, y, y)] + [pk('fma', T, y + 2*d, y + 2*d, T) for d in (1, 2, 3)] + [I(f'v_add_f32 v{a2}, v{T}, v{T+1}'),
          I(f's_add_u32 s{sTOK}, s{sTOK}, {STAT_OFF}'), I(f'v_lshlrev_b32 v{R.u0}, 24, v{R.L}')] + wave_sum(a2)
    o += bf16r(T, a1) + bf16r(t, a2) + [I(f'v_add_f32 v{t}, 0x3727c5ac, v{t}')] + bf16r(t, t) + [I(f'v_sqrt_f32 v{t}, v{t}')] + bf16r(t, t)
    o += [I(f'v_rcp_f32 v{T+1}, v{t}'), I(f'v_mul_f32 v{T+3}, v{t}, v{t}'), I(f'v_mul_f32 v{T+2}, {LOG2E | 0x80000000:#x}, v{T+1}')]
    o += [I(f'buffer_store_dwordx4 {v(T,4)}, v{R.u0}, s[{sWS}:{sWS+3}], s{sTOK} offen{SC}', 'rst')]
    return o

def w2_dma(R, th, t, h):
    pre = [I(f'v_add_u32 v{R.W2d}, s{sNW}, v{R.W2d}')] if (t == 16 and h == 0 and th == 1) else []
    if t == SPLIT[th] and h == 0: pre = [I(f's_lshl_b32 s{sW2o}, s{sDl}, s{sSH}'), I(f'v_add_u32 v{R.W2d}, s{sW2o}, v{R.W2d}')]
    if t == 0 and h == 0:
        d = sWo if th else sWd
        pre = [I(f's_cmp_eq_u32 s{sSH}, 10'), I(f's_cselect_b64 s[{d}:{d+1}], s[{sWS}:{sWS+1}], s[{d}:{d+1}]'), I(f's_cselect_b32 s{d+2}, s{sWS+2}, s{d+2}')]
    if t == NOR2[th] and h == 0: pre += [I(f'v_mov_b32 v{R.W2d}, 0x20000000')]
    g = dma(R.W2d, sWo if th else sWd, sW2o, sLX, PAIR[6 if t == 18 else t % 9] + 8192 * h, f'U{t}')
    return pre + [g[0], I(f's_lshl_b32 s{sW2o}, {t % SPLIT[th] * 2 + h}, s{sSH}'), g[1]]

def interval_dmas(R, typ, th, i):
    g = []
    for e in (1, 0):
        S2 = i + 4 - e
        if S2 % 2 == 0 and 1 <= S2 // 2 < 8:
            S = S2 // 2
            g.append(dma(R.Xd, sX, sXo1 if e else sXo0, sLX, XBASE + (S % 3) * XSLOT + 2048 + e * 8192, f'X{S}', KP[S] * 128))
            if e == 1 and typ == 'A' and th == 1: g.append(halo_dma(R, S))
    sg = i + 4
    if sg < 16:
        base = WBASE + (sg % 5) * WSLOT; t = f'W{sg}'
        row = KP[sg // 2] * 64 + (sg & 1) * 32
        ua, ug = I(f's_mov_b32 s{sKa}, {row*3072}'), I(f's_mov_b32 s{sKg}, {row*3584}')
        a = dma(R.Va, sA, sKa if typ == 'A' else sKg, sLW, base + th * 8192, t)
        b = dma(R.Vb, sB, sKa if (typ == 'A' and th == 0) else sKg, sLW, base + th * 8192 + 4096, t)
        g += [[a[0], ua if typ == 'A' else ug, a[1]], [b[0], ug, b[1]] if (typ == 'A' and th == 1) else b]
        if th == 1: g.append(dma(R.Vb if typ == 'A' else R.Vc, sCc, sKg, sLW, base + 16384, t))
    if i >= 12:
        k0 = sum(NU[x] for x in range(12, i))
        g += [w2_dma(R, th, u // 2, u & 1) for u in range(k0, k0 + NU[i])]
    return g

ORDER = {'A': [1, 2, 0, 3, 4], 'B': [0, 2, 1, 3, 4]}
def reads(R, typ, th, st):
    xo = XBASE + ((st // 2) % 3) * XSLOT + th * 8192
    xr = R.Xr1 if st & 1 else R.Xr0
    slot = st % 5; wf = R.wf[st & 1]
    wr, mr, wo = (R.Wa, R.Ma, slot * WSLOT) if slot < 3 else (R.Wb, R.Mb, (slot - 3) * WSLOT)
    def w(p):
        if typ == 'B' and p == 4:
            return [I(f'ds_read_b64_tr_b16 {v(wf[p] + 2*h, 2)}, v{mr} offset:{wo + 16384 + 256*h}') for h in range(2)]
        return [I(f'ds_read_b64_tr_b16 {v(wf[p] + 2*h, 2)}, v{wr} offset:{wo + 4096*p + 512*h}') for h in range(2)]
    def x(i): return [I(f'ds_read_b128 {v(R.xf[i], 4)}, v{xr} offset:{xo + (i+1)*2048}')]
    o = w(ORDER[typ][0]) + x(3) + x(2) + x(1) + x(0) + (x(-1) if R.halo else [])
    for p in ORDER[typ][1:]: o += w(p)
    return o

def mfma16(d, a, b, c):
    return I(f'v_mfma_f32_16x16x32_bf16 {v(d,4)}, {v(a,4)}, {v(b,4)}, ' + (v(c,4) if c is not None else '0'))
def mfmas(R, typ, th, st):
    o = []; wf = R.wf[st & 1]
    for n, p in enumerate(ORDER[typ]):
        tiles = [3, 2, 1, 0] + ([-1] if (R.halo and p in (1, 2)) else [])
        if n & 1: tiles = tiles[::-1]
        if st & 1 and p in R.csp:
            o.append(I(f'v_smfmac_f32_16x16x64_bf16 {v(R.cs[p],4)}, {v(R.ones,4)}, {v(R.wf[0][p],8)}, v{R.idx}'))
        for i in tiles:
            d = R.acc[p][i]; c = d if st else None
            if typ == 'A' and p == 2: o.append(mfma16(d, R.xf[i], wf[p], c))
            else: o.append(mfma16(d, wf[p], R.xf[i], c))
    return o

def pk(op, d, a, b, c=None, mod=''):
    return I(f'v_pk_{op}_f32 {v(d,2)}, {v(a,2)}, {v(b,2)}' + (f', {v(c,2)}' if c is not None else '') + (' ' + mod if mod else ''))
def corr(a, cs, st):
    return [pk('fma', a + r, st, cs + r, a + r, 'op_sel_hi:[0,1,1] neg_lo:[1,0,0] neg_hi:[1,0,0]') for r in (0, 2)]
def ffn_tail(g, u, st, T, out):
    o = [pk('mul', T + r, g + r, st + 2, None, 'op_sel_hi:[1,0]') for r in (0, 2)]
    o += [I(f'v_exp_f32 v{T+r}, v{T+r}') for r in range(4)]
    o += [pk('mul', g + r, g + r, u + r) for r in (0, 2)]
    o += [pk('fma', T + r, st + 2, T + r, st + 2, 'op_sel:[1,0,1]') for r in (0, 2)]
    o += [I(f'v_rcp_f32 v{T+r}, v{T+r}') for r in range(4)]
    o += [pk('mul', g + r, g + r, T + r) for r in (0, 2)]
    o += [I(f'v_cvt_pk_bf16_f32 v{out}, v{g}, v{g+1}'), I(f'v_cvt_pk_bf16_f32 v{out+1}, v{g+2}, v{g+3}')]
    return o
def store_frag(R, q, soff, voff=None):
    return [I(f'v_permlane16_swap_b32 v{q}, v{q+2}'), I(f'v_permlane16_swap_b32 v{q+1}, v{q+3}')] + ([I(f's_mov_b32 exec_lo, {DIAG:#x}')] if DIAG else []) + [
            I(f'buffer_store_dwordx4 {v(q,4)}, v{R.L16 if voff is None else voff}, s[{sWS}:{sWS+3}], s{soff} offen{SC}', 'act')] + ([I('s_mov_b32 exec_lo, -1')] if DIAG else [])

def keep_scc(items):
    out = []
    for i in items:
        if i.mn.startswith(('s_cselect', 's_addc')): out[-1].append(i)
        else: out.append([i])
    return out
def weave(main, fill):
    out = []; k = 0
    for j, g in enumerate(main):
        while k < len(fill) and k * len(main) <= j * len(fill): out.append(fill[k]); k += 1
        out.append(g)
    return flat(out + fill[k:])

def place(m, groups):
    n = len(m); slots = [[] for _ in range(n + 1)]
    for items, a, b in groups:
        a = min(a, n - 1); b = max(min(b, n), a + 1)
        for k, it in enumerate(items):
            slots[1 + a + k * (b - a) // len(items)].extend(it if isinstance(it, list) else [it])
    o = list(slots[0])
    for k in range(n): o += [m[k]] + slots[k + 1]
    return o
def memphase(rd, dm, lead=0):
    rd = list(rd); o = rd[:lead]; rd = rd[lead:]; n0 = len(rd)
    for k, g in enumerate(dm):
        upto = n0 * k // len(dm)
        while n0 - len(rd) < upto: o.append(rd.pop(0))
        if len(g) == 2 and 'm0' in g[0].text and rd and rd[0].kind == 'ds': o += [g[0], rd.pop(0), g[1]]
        else: o += g
    return o + rd

_q = [184 + 4 * k for k in range(8)] + [220 + 8 * p for p in range(5)] + [216 + 8 * p for p in range(5)] + [104 + 4 * k for k in range(20)]
WREG = [_q[2 * t: 2 * t + 2] for t in range(19)]
def wread(wr, t):
    p = PAIR[6 if t == 18 else t % 9]
    k, off = (0, p) if p < _W1 else (1, p - _W1) if p < _W1 + 65536 else (2, p - _W1 - 65536)
    return [I(f'ds_read_b64_tr_b16 {v(WREG[t][nt] + 2*rho, 2)}, v{wr + 2*k + nt} offset:{off + rho*512}') for nt in range(2) for rho in range(2)]
def poll_issue(th, p): return [I(f's_buffer_load_dwordx{4 + 4*th} s[{sPoll}:{sPoll + 3 + 4*th}], s[{sWS}:{sWS+3}], s{sFo} offset:{p*128} glc')]

def stream(R0, typ, th):
    R = copy.copy(R0); A = Alloc(38, 154)
    R.halo = typ == 'A' and th == 0
    NE, SK, THR = NES[typ], SKS[typ], THRS[typ]
    R.csp = [] if th else [0, 3, 4] if (typ == 'A' and HONES) else [0, 1, 2, 3, 4]
    R.acc = [{i: A(4) for i in ([-1] if (typ == 'A' and p in (1, 2)) else []) + [0, 1, 2, 3]} for p in range(5)]
    R.cs = [A(4) for p in range(5)]
    T = A(4)
    R.xf = {i: 154 + 4 * (i + 1) for i in range(-1, 4)}
    w8 = [216 + 8 * p for p in range(5)]
    R.wf = [w8, [x + 4 for x in w8]] if th == 0 else [w8, w8]
    wr, ex, s16, sg, t0, t1, t2 = R.wr, R.ex, R.s16, R.sg, R.t0, R.t1, R.t2
    stq = {0: A(4), 1: 18, 2: 22, 3: 180, -1: 176}
    dq = [(x, g) for x in range(-3, 17) for g in interval_dmas(R, typ, th, x)]
    def D(i):
        k = 0; q = QUOTA[th]
        while k < len(dq) and dq[k][0] <= max(i, 0) and (k < q[min(i + 1, len(q) - 1)] or dq[k][0] <= i - 2 or i >= 16): k += 1
        g = [x[1] for x in dq[:k]]; del dq[:k]
        return g
    o = [I(f'L_{typ}{th}:')] + first_loads(R, typ, th) + [I(f's_setprio {LPRIO[th]}')]
    d0 = D(-1)
    if PI[0] == -1 and pf_mine(typ, th, 0): d0.insert(min(PFPOS + th, len(d0)), pf_load(R, typ, th, 0))
    sA_, (sB_, sC_), sS = setup_a(R, typ, th), setup_b(R, typ, th), row_stats(R)
    later = {}
    cpl = [I(f'buffer_load_dwordx4 {v(R.cv,4)}, v{R.c1}, s[{sWo}:{sWo+3}], 0 offen offset:{CPY % 8 * 128}')]
    if th == 1 and CPY < 8 and CPI[0] == -1:
        k = max(n for n, x in enumerate(sB_) if ('v', R.c2) in x.dst) + 1
        sB_ = sB_[:k] + cpl + sB_[k:]
    sC_ = keep_scc(sC_); npc = len(SBI[th])
    for k, x in enumerate(SBI[th]):
        piece = flat(sC_[k * len(sC_) // npc:(k + 1) * len(sC_) // npc])
        if x < 0: sB_ = sB_ + piece
        else: later[x] = later.get(x, []) + piece
    code = keep_scc(sA_[R.na:])
    walk = [I('s_mov_b64 exec, 0'), I(f's_branch L_P{th}w{typ}'), I(f'L_{typ}{th}r:'), I('s_mov_b64 exec, -1')]
    if NAP[0] < 99: later[NAP[0]] = later.get(NAP[0], []) + [I(f's_sleep {NAP[1]}')]
    if 0 <= WARM[th] < 99: later[WARM[th]] = later.get(WARM[th], []) + walk
    code += keep_scc(sB_ + stamp('setup')) + ([walk] if WARM[th] == -1 else []) + keep_scc(sS)
    k0, k1 = int(len(code) * W0[th] / 100), int(len(code) * W1[th] / 100)
    o += sA_[:R.na] + flat(code[:k0]) + weave(code[k0:k1], d0) + flat(code[k1:]) + stamp('late')
    for i in range(17):
        o += [waitlgkm0() if i else I('s_waitcnt lgkmcnt(0)'), waitvm(f'W{i}', f'X{i//2}', *(['rst'] if i == AT0 else ['stat'] if i == 16 else [])), I('s_barrier')] + stamp(f's{i}')
        dm = D(i)
        dm += [pf_load(R, typ, th, k) for k in range(4) if PI[k] == i and pf_mine(typ, th, k)]
        if th == 1:
            if CPY < 8 and i == CPI[0]: dm.append(cpl)
            if CPY < 8 and i == CPI[1]: dm.append([I(f'buffer_store_dwordx4 {v(R.cv,4)}, v{R.c2}, s[{sWS}:{sWS+3}], 0 offen{SC}', 'rst')])
            if AT0 <= i < AT0 + ATN:
                dm.append([I(f's_and_b32 s3, s{sC}, {ATN - 1}'), I(f's_cmp_eq_u32 s3, {i - AT0}'), I(f's_cbranch_scc0 L_{typ}a{i}'),
                           I(f'RAW buffer_atomic_add v{R.one}, v{R.at}, s[{sDbg}:{sDbg+3}], 0 offen{SC}'), I(f'L_{typ}a{i}:')])
            ld = f'buffer_load_dword v{R.p1}, v{R.L16}, s[{sDbg}:{sDbg+3}], s{sLW} offen{SC}'
            if i == CHK: dm.insert(0, [I(ld, 'chk')])
            if i == CHK + 1:
                chk = [f'v_cmp_gt_u32 vcc, 16, v{R.p1}', 's_nop 0', f's_and_b32 s{sa}, vcc_lo, s{sb}']
                g = [I(f's_cmp_eq_u32 s{sC}, 0'), I(f's_cselect_b32 s{sb}, 0xffff, 0'), waitvm('chk')] + [I(x) for x in chk]
                g += [I(f's_cbranch_scc0 L_{typ}ck'), I(f'RAW s_mov_b32 s{sc_}, {SPIN}'), I(f'L_{typ}cl:')]
                g += [I('RAW ' + x) for x in ['s_sleep 8', ld, f's_sub_u32 s{sc_}, s{sc_}, 1', 's_waitcnt vmcnt(0)', f's_cbranch_scc1 L_{typ}ck'] + chk + [f's_cbranch_scc1 L_{typ}cl']]
                later[i] = g + [I(f'L_{typ}ck:')]
            if i == STI:
                st_ = [[I(f's_add_u32 m0, s{sSD}, {ST4}'), I(f's_lshr_b32 s{sSD}, s{sSD}, 2'), I(f'buffer_load_dwordx4 v{R.Sv}, s[{sWS}:{sWS+3}], 0 offen{SC} lds', 'stat')]]
                if typ == 'A':
                    st_ += [[I(f's_add_u32 m0, s{sSD}, {SMO}'), I(f'buffer_load_dword v{R.Sv}, s[{sWS}:{sWS+3}], 0 offen{SC} lds', 'stat')],
                            [I(f's_add_u32 m0, s{sSD}, {SRO - 4}'), I(f'buffer_load_dword v{R.Sv}, s[{sWS}:{sWS+3}], 0 offen offset:4{SC} lds', 'stat')]]
                dm = st_ + dm
        if i < 16: rd = reads(R, typ, th, i)
        else:
            csr = []; rd = []
            for p in ORDER[typ]:
                if typ == 'A' and p == 2: csr.append(I(f'ds_read_b32 v{R.cs[p]}, v{t2} offset:{CSO + p*256}'))
                else: csr.append(I(f'ds_read_b128 {v(R.cs[p],4)}, v{t0} offset:{CSO + p*256}'))
            for k in range(3, -2 if R.halo else -1, -1) if typ == 'A' else range(4):
                rd.append(I(f'ds_read_b128 {v(stq[k],4)}, v{s16} offset:{ST4 + (th*64 + (k+1)*16)*16}'))
            rd += flat([waitvm(f'U{t}')] + wread(wr, t) for t in range(NRD[th]))
        if th == 0:
            m = mfmas(R, typ, th, i) if i < 16 else []
            if i == 15:
                sm = [x for x in m if x.mn.startswith('v_smfmac')]; m = [x for x in m if not x.mn.startswith('v_smfmac')]
                m = m[:8] + sm + m[8:]
                m = place(m, [([I(f'v_add_f32 v{R.cs[p]}, v{R.cs[p]}, v{R.cs[p]+1}') for p in R.csp], len(m) - 4, len(m) - 1)])
            if i == 16:
                if typ == 'A' and HONES:
                    o += [I('s_mov_b32 exec_lo, 0x10001'), I('s_mov_b32 exec_hi, 0x10001'), I(f'ds_write_b128 v{t0}, {v(R.acc[1][-1],4)} offset:{CSO + 256}'),
                          I('s_mov_b64 exec, 0xffff'), I(f'ds_write_b32 v{t2}, v{R.acc[2][-1]} offset:{CSO + 512}'), I('s_mov_b64 exec, -1')]
                o += [I(f'ds_write_b32 v{t2}, v{R.cs[p]} offset:{CSO + p*256}') for p in R.csp]
                rd = csr + rd
                held = dm[D16:]; dm = dm[:D16]
            if i == 0 and I0 & 1: o += rd + place(m, [(dm, 6, len(m))]) + later.get(i, [])
            else: o += (rd + flat(dm) if i == 0 else memphase(rd, dm, 2)) + m + later.get(i, [])
            if i == 16 and typ == 'B': o += [waitreg(R.cs[4], 4), I('s_barrier')]
        else:
            o += mfmas(R, typ, th, i - 1) if i else []
            if i == 16 and typ == 'B': o += [I('s_barrier')]; rd = rd + csr
            o += (flat(dm) + rd if (i == 0 and I0 & 2) else memphase(rd, dm)) + later.get(i, [])
    o += [I(f's_setprio {EPRIO[th]}')] + stamp('loop')
    Q = [164, 168]; b = []
    def ffn_pair(pg, pu, so):
        g = []
        for hf in range(2):
            for i in (2*hf, 2*hf+1):
                g += corr(R.acc[pg][i], R.cs[pg], stq[i]) + corr(R.acc[pu][i], R.cs[pu], stq[i])
                g += ffn_tail(R.acc[pg][i], R.acc[pu][i], stq[i], T, R.acc[pu][2*hf] + 2*(i & 1))
            g += store_frag(R, R.acc[pu][2*hf], so + hf)
        return g
    if typ == 'B':
        stm = [172, 176]
        for i in range(2): b.append(I(f'ds_read_b128 {v(stm[i],4)}, v{t1} offset:{ST4 + (th*64 + (i+1)*16)*16}'))
        b += ffn_pair(0, 2, sST) + ffn_pair(1, 3, sST + 2)
        for i in range(4): b += corr(R.acc[4][i], R.cs[4], stq[i])
        for i in range(2):
            for r in range(4): b.append(I(f'v_permlane32_swap_b32 v{R.acc[4][i]+r}, v{R.acc[4][i+2]+r}'))
        for i in range(2): b += ffn_tail(R.acc[4][i], R.acc[4][i+2], stm[i], T, Q[0] + 2*i)
        b += store_frag(R, Q[0], sST + 4, ex)
    else:
        vm, vr, vb = [172, Q[0]], [26, Q[1]], 154
        def vrd(i):
            off = (th*64 + (i+1)*16) * 4
            return [I(f'ds_read_b128 {v(vr[i&1],4)}, v{sg} offset:{SRO + off}'), I(f'ds_read_b128 {v(vm[i&1],4)}, v{sg} offset:{SMO + off}')]
        seq = [3, 2, 1, 0, -1] if th == 0 else [3, 2, 1, 0]
        b += vrd(seq[0])
        for n, i in enumerate(seq):
            a = R.acc[2][i]; k = R.acc[1][i]
            if n + 1 < len(seq): b += vrd(seq[n + 1])
            b += corr(k, R.cs[1], stq[i]) + [pk('mul', k + r, stq[i], k + r, None, 'op_sel:[1,0]') for r in (0, 2)]
            b += [I(f'v_cvt_pk_bf16_f32 v{k+j}, v{k+2*j}, v{k+2*j+1}') for j in range(2)]
            b += [pk('fma', a + r, vm[i&1] + r, R.cs[2], a + r, 'op_sel_hi:[1,0,1] neg_lo:[1,0,0] neg_hi:[1,0,0]') for r in (0, 2)]
            b += [pk('mul', a + r, a + r, vr[i&1] + r) for r in (0, 2)]
            b += [I(f'v_cvt_pk_bf16_f32 v{vb+2*(i+1)+j}, v{a+2*j}, v{a+2*j+1}') for j in range(2)]
            if n == 0 and th == 0:
                b += [I(f'ds_write_b64 v{ex}, {v(k,2)} offset:{XBASE + 32*1024}'), I(f'ds_write_b64 v{ex}, {v(vb + 8, 2)} offset:{XBASE + 34*1024}')]
            if i >= 0:
                q = R.acc[0][i]
                b += corr(q, R.cs[0], stq[i]) + [I(f'v_cvt_pk_bf16_f32 v{k+2+j}, v{q+2*j}, v{q+2*j+1}') for j in range(2)]
            if n == BN and th == 0: b += [waitlgkm0(), I('s_barrier')]
        negc = R.acc[2][-1]
        def m16(d, a, b_, c): return I(f'v_mfma_f32_16x16x16_bf16 {v(d,4)}, {v(a,2)}, {v(b_,2)}, ' + (v(c,4) if c is not None else '0'))
        mP, mC0, mC1, t = [vm[0] + j for j in range(4)]; M = vr[0]
        msk = [I(f'v_bfe_i32 v{mP}, v{R.L}, 0, 1'),
               I(f'v_and_b32 v{t}, 14, v{R.L}'), I(f'v_lshrrev_b32 v{t0}, 2, v{sg}'), I(f'v_sub_u32 v{t}, v{t}, v{t0}'),
               I(f'v_not_b32 v{mC0}, v{t}'), I(f'v_ashrrev_i32 v{mC0}, 31, v{mC0}'),
               I(f'v_sub_u32 v{mC1}, 1, v{t}'), I(f'v_ashrrev_i32 v{mC1}, 31, v{mC1}'),
               I(f'v_xor_b32 v{t}, 0xffff, v{mP}'),
               I(f'v_and_b32 v{M+2}, v{t}, v{mC0}'), I(f'v_and_b32 v{M+3}, v{t}, v{mC1}'),
               I(f'v_xor_b32 v{M}, v{t}, v{M+2}'), I(f'v_xor_b32 v{M+1}, v{t}, v{M+3}')]
        if th == 0:
            msk = [[I(f's_cmp_eq_u32 s{sRB}, 0'), I(f's_cselect_b32 s{sa}, 0xf149f2ca, 0')]] + [I(f'v_mov_b32 v{negc+r}, s{sa}') for r in range(4)] + msk
        sm = []; k = R.acc[1]
        for i in (3, 2, 1, 0):
            sm += [m16(R.acc[0][i], k[i], k[i] + 2, None), m16(R.acc[2][i], k[i-1], k[i] + 2, negc if (i == 0 and th == 0) else None)]
        b += place(sm, [(msk, 0, 8)])
        sel = lambda d, m, a, b_: I(f'v_bitop3_b32 v{d}, v{m}, v{a}, v{b_} bitop3:0xca')
        c = R.acc[0]
        for i in (3, 2, 1, 0):
            p = R.acc[2][i]
            b += [sel(c[i], mP, c[i]+1, c[i]), sel(c[i]+1, mP, c[i]+3, c[i]+2), sel(p, mP, p+1, p), sel(p+1, mP, p+3, p+2),
                  sel(c[i], mC0, c[i], p), sel(c[i]+1, mC1, c[i]+1, p+1), I(f'v_max_f32 v{c[i]+2}, v{c[i]}, v{c[i]+1}')]
        x = [c[i] + 2 for i in range(4)]
        ke = [I(f'v_mul_f32 v{c[i]+3}, 0xbe800000, v{stq[i]+2}') for i in range(4)]
        b += [I(f'v_permlane16_swap_b32 v{x[2]}, v{x[3]}'), ke[0], I(f'v_permlane16_swap_b32 v{x[0]}, v{x[1]}'), I(f'v_max_f32 v{x[2]}, v{x[2]}, v{x[3]}'),
              I(f'v_max_f32 v{x[0]}, v{x[0]}, v{x[1]}'), ke[1], ke[2], I(f'v_permlane32_swap_b32 v{x[0]}, v{x[2]}'), I(f'v_max_f32 v{x[0]}, v{x[0]}, v{x[2]}'),
              I(f'v_mov_b32 v{x[2]}, v{x[0]}'), ke[3], I(f'v_permlane32_swap_b32 v{x[0]}, v{x[2]}'), I(f'v_mov_b32 v{x[1]}, v{x[0]}'), I(f'v_mov_b32 v{x[3]}, v{x[2]}'),
              I(f'v_permlane16_swap_b32 v{x[0]}, v{x[1]}'), I(f'v_permlane16_swap_b32 v{x[2]}, v{x[3]}')]
        for i in range(4):
            b += [pk('add', c[i], c[i], c[i] + 2, None, 'op_sel_hi:[1,0] neg_lo:[0,1] neg_hi:[0,1]'),
                  pk('mul', c[i], c[i] + 2, c[i], None, 'op_sel:[1,0]'), I(f'v_exp_f32 v{c[i]}, v{c[i]}'), I(f'v_exp_f32 v{c[i]+1}, v{c[i]+1}')]
        pv = []
        for i in range(4):
            p = R.acc[1][i]
            g = [I(f'v_cvt_pk_bf16_f32 v{c[i]}, v{c[i]}, v{c[i]}'), I(f'v_cvt_pk_bf16_f32 v{c[i]+1}, v{c[i]+1}, v{c[i]+1}'),
                 I(f'v_and_b32 v{p}, v{c[i]}, v{M}'), I(f'v_and_b32 v{p+1}, v{c[i]+1}, v{M+1}'), I(f'v_and_b32 v{p+2}, v{c[i]}, v{M+2}'), I(f'v_and_b32 v{p+3}, v{c[i]+1}, v{M+3}')]
            b += g[:2] + pv[:1] + g[2:4] + pv[1:] + g[4:]
            pv = [mfma16(R.acc[2][i], R.ones, p, None), mfma16(c[i], vb + 2*i, p, None)]
        b += pv + ffn_pair(3, 4, sST)
        for i in range(4): b.append(I(f'v_rcp_f32 v{R.acc[2][i]}, v{R.acc[2][i]}'))
        for hf in range(2):
            for i in (2*hf, 2*hf+1):
                b += [pk('mul', c[i] + r, c[i] + r, R.acc[2][i], None, 'op_sel_hi:[1,0]') for r in (0, 2)]
                b += [I(f'v_cvt_pk_bf16_f32 v{Q[hf]+2*(i&1)+j}, v{c[i]+2*j}, v{c[i]+2*j+1}') for j in range(2)]
            b += store_frag(R, Q[hf], sST + 2 + hf)
    if th == 0 and held:
        b = keep_scc(b); k = len(b) // 8
        b = flat(b[:k]) + weave(b[k:4*k], held) + flat(b[4*k:])
    stage = [[waitvm(f'U{t}')] + wread(wr, t) for t in range(NRD[th], 2)]
    for t in range(9):
        if t + 2 in range(max(NRD[th], 2), 9): stage.append([waitvm(f'U{t+2}')] + wread(wr, t + 2))
        thr = [I(f's_waitcnt vmcnt({THR - 1})')] if THR else []
        if t < NE[th]: stage += [[waitreg(WREG[t][1], 4)] + thr + w2_dma(R, th, t + 9, 0), thr + w2_dma(R, th, t + 9, 1)]
    halo = [I('s_barrier'), I(f'ds_read_b64 {v(R.acc[1][-1],2)}, v{ex} offset:{XBASE + 32*1024}'), I(f'ds_read_b64 {v(154,2)}, v{ex} offset:{XBASE + 34*1024}')] + csr if (typ == 'A' and th) else []
    if NE[th]: o += flat(stage[:BS]) + halo + flat(stage[BS:]) + stamp('u8a') + b + stamp('epi')
    else: o += halo + stamp('u8a') + b + stamp('epi') + flat(stage)
    npre = min(NES['A'][th], NES['B'][th])
    fast = FAST and th == 1 and npre == 9
    if fast:
        o[-FP:-FP] = [waitlgkm0()] + poll_issue(th, 0)
        first = [f's_mov_b32 s{sAr}, {n*1024}' * (n & 3 == 0) or None for n in range(NAS[th])]
        ld = []
        for n in range(NAS[th]):
            if first[n]: ld.append(first[n])
            ld.append(f'buffer_load_dwordx4 {v(56 + 4*n, 4)}, v{R.av}, s[{sWS}:{sWS+3}], s{sAr} offen' + (f' offset:{(n & 3) * 1024}' if n & 3 else '') + SC)
        o += [waitlgkm0(), waitvm('U17')] + [I(f's_and_b32 s{sPoll}, s{sPoll}, s{sPoll+k}') for k in range(1, 5)] + [I('s_cbranch_scc1 L_P1x')]
    o += [waitlgkm0()] + ([waitvm(f'U{8 + npre}')] + flat(wread(wr, t) for t in range(9, 9 + npre)) if npre else [])
    rest = [[I(f'buffer_load_dwordx2 {v(20 + 2*q, 2)}, v{R.a4 if q else R.xo}, s[{sX}:{sX+3}], 0 offen')] for q in range(2)]
    rest += [w2_dma(R, th, t, h) for t in range(9 + NE[th], 18) for h in range(2)]; sk = min(2 * SK[th] + 2, len(rest))
    signal = [waitvm('act'), I('s_mov_b64 exec, 1'), I(f'ds_add_rtn_u32 v{t0}, v{R.L}, v{R.one} offset:{CNT + 4*th}'), waitlgkm0(),
              I(f'v_readfirstlane_b32 s{sa}, v{t0}'), I('s_mov_b64 exec, -1'), I(f's_xor_b32 s{sa}, s{sa}, 3'), I(f's_lshl_b32 s{sa}, s{sa}, 24'), I(f'v_add_u32 v{t0}, s{sa}, v{R.fs}'),
              I(f'buffer_store_dword v{R.one}, v{t0}, s[{sWS}:{sWS+3}], 0 offen{SC}'), I(f's_setprio {P2PRIO[th]}')] + stamp('flag')
    if THR0: rest = rest[:sk] + [[I(f's_waitcnt vmcnt({THR0 - 1})')] + g for g in rest[sk:]]
    o += flat(rest[:sk])
    if rest[sk:]: o += signal + flat(rest[sk:-4]) + poll_issue(th, 0) + flat(rest[max(sk, len(rest) - 4):])
    else: o += poll_issue(th, 0) + signal
    if fast:
        alt = [i.text for i in stamp('go0')] + ld + [i.text for i in flat(wread(wr, t) for t in range(9, 18)) + flat(rest)] + [f's_waitcnt vmcnt({NAS[th] + 2})']
        alt += ['s_waitcnt lgkmcnt(0)' if i.mn == 'WAITLGKM' else i.text for i in signal[1:]] + ['s_branch L_P1f']
        R0.alt = [I('L_P1x:')] + [I('RAW ' + x) for x in alt]
    return o + [I(f's_branch L_P{th}')]

def phase2(R, th):
    L, L16, t0, t1, t2, wr, xo, av, one = R.L, R.L16, R.t0, R.t1, R.t2, R.wr, R.xo, R.av, R.one
    ra, zr, xv, acc, wa, xo1, ra1 = 18, 19, 20, [24, 40], 100, R.a4, R.ex
    NA, LA1 = NAS[th], LAS[th]
    af = [56 + 4 * k for k in range(NA)]; assert NA <= 10; av2 = 99
    NT = 19 - th; P = f'L_P{th}'
    chk = [f's_and_b32 s{sPoll}, s{sPoll}, s{sPoll+k}' for k in range(1, 3 + 2 * th)]
    def poll_check(p):
        return [waitlgkm0()] + [I(x) for x in chk] + [I(f's_cbranch_scc1 {P}g{p}'), I(f'RAW s_mov_b32 s{sc_}, {SPIN}'), I(f'{P}p{p}:')] + [I('RAW ' + x) for x in
                [f's_sleep {SLEEP}', poll_issue(th, p)[0].text, f's_sub_u32 s{sc_}, s{sc_}, 1', 's_waitcnt lgkmcnt(0)', f's_cbranch_scc1 {P}g{p}'] + chk +
                [f's_cbranch_scc0 {P}p{p}']] + [I(f'{P}g{p}:')] + stamp(f'go{p}')
    def aload(n):
        p, t = divmod(n, NT); g = []
        if t == 0 and p == 1: g += poll_check(1)
        u = t % SPLIT[th]
        if u & 3 == 0: g += [I(f's_mov_b32 s{sAr}, {p*2*144*1024 + u*1024}')]
        if n == SPLIT[th]: g += [I(f's_lshl_b32 s{sa}, s{sDl}, 9'), I(f'v_add_u32 v{av2}, s{sa}, v{av}')]
        if n == 16 and th == 1: g += [I(f'v_add_u32 v{t1}, s{sNW}, v{av2}')]
        vo = t1 if (th == 1 and t >= 16) else av2 if t >= SPLIT[th] else av
        return g + [I(f'buffer_load_dwordx4 {v(af[n % NA],4)}, v{vo}, s[{sWS}:{sWS+3}], s{sAr} offen' + (f' offset:{(u & 3) * 1024}' if u & 3 else '') + SC)]
    nxt = [NA]
    def more(n):
        g = poll_issue(th, 1) if n == NT - LA1 - 2 else []
        lim = min(n + 1 + NA, 2 * NT) if n >= NT - LA1 else min(n + 1 + NA, NT)
        while nxt[0] < lim: g += aload(nxt[0]); nxt[0] += 1
        return g
    o = (getattr(R, 'alt', []) if th else []) + [I(f'{P}:')] + stamp('r2') + [I('s_waitcnt lgkmcnt(0)')] + poll_check(0) + flat(aload(n) for n in range(NA)) + [I(f'{P}f:')]
    o += [I(f's_mov_b32 s{sd}, {_W1}'), I(f'v_and_b32 v{t2}, 0x200, v{L16}'), I(f'v_lshrrev_b32 v{t0}, 4, v{t2}'), I(f'v_add_u32 v{t0}, v{t0}, v{L16}'), I(f'v_add_u32 v{t2}, s{sLX}, v{t2}')]
    for j in range(4):
        o += [I(f'v_add_u32 v{wa+j}, {64*j}, v{t0}'), I(f'v_and_b32 v{wa+j}, 0x1f0, v{wa+j}'), I(f'v_add3_u32 v{wa+j}, v{wa+j}, v{t2}, s{sd}')]
    o += [I(f'v_and_b32 v{t0}, 7, v0'), I(f'v_lshrrev_b32 v{t2}, 4, v0'), I(f'v_lshl_add_u32 v{t0}, v{t0}, 1, v{t2}'), I(f'v_and_b32 v{t0}, 31, v{t0}'),
          I(f'v_bfe_u32 v{t2}, v0, 1, 3'), I(f'v_lshl_add_u32 v{t2}, v{t2}, 13, s{sd}'), I(f'v_lshl_add_u32 v{ra}, v{t0}, 4, v{t2}'),
          I(f'v_and_b32 v{t0}, 1, v0'), I(f'v_lshl_add_u32 v{ra}, v{t0}, 9, v{ra}'),
          I(f'v_lshrrev_b32 v{t0}, 7, v0'), I(f'v_lshlrev_b32 v{ra1}, 13, v{t0}'), I(f'v_bfe_u32 v{t2}, v0, 4, 3'), I(f'v_lshl_add_u32 v{ra1}, v{t2}, 7, v{ra1}'),
          I(f'v_and_b32 v{t0}, 7, v0'), I(f'v_lshl_add_u32 v{ra1}, v{t0}, 4, v{ra1}'), I(f'v_bfe_u32 v{t0}, v0, 3, 1'), I(f'v_mul_u32_u24 v{t0}, {4*8192 + 4096}, v{t0}'),
          I(f'v_add_u32 v{ra1}, v{ra1}, v{t0}'),
          I(f'v_mov_b32 v{zr}, 0'), I(f's_mov_b32 s{sL2E}, {LOG2E | 0x80000000:#x}')]
    def slab_write(p):
        if p == 1:
            return [I(f's_add_u32 m0, s{sLX}, {XBASE}'), I('s_nop 0')] + [
                I(f'ds_write_addtid_b32 v{acc[nt] + r} offset:{8192*(4*nt + r//4) + 4096*nt + 256*(r & 3)}') for nt in range(2) for r in range(16)]
        return [I(f'ds_write_b128 v{wa+j}, {v(acc[nt] + 4*j, 4)} offset:{8192*(4*nt + j)}') for nt in range(2) for j in range(4)] + [
            I('s_mov_b64 exec, 1'), I(f'ds_add_u32 v{L}, v{one} offset:{CNT + 8}'), I('s_mov_b64 exec, -1')]
    Pq = flat(WREG[:4]); X = WREG[4][0]
    def fin_read(p):
        return [I(f'ds_read_b128 {v(Pq[k], 4)}, v{ra1 if p else ra} offset:{(XBASE if p else 0) + k*1024}') for k in (0, 1, 2, 3, 6, 7, 4, 5)]
    def fin_x(p):
        return flat([I(f'v_lshlrev_b32 v{X+2*d}, 16, v{xv+2*p+d}'), I(f'v_and_b32 v{X+2*d+1}, 0xffff0000, v{xv+2*p+d}')] for d in range(2))
    def fin_math(p):
        f = Pq[0]; T = Pq[1]; pr = (0, 2); g = []
        for a, b in ((0, 1), (2, 3), (6, 7), (0, 2), (0, 6)): g += [pk('add', Pq[a] + r, Pq[a] + r, Pq[b] + r) for r in pr]
        g += [I(f'v_pk_mul_f32 {v(T+r,2)}, {v(f+r,2)}, s[{sL2E}:{sL2E+1}] op_sel_hi:[1,0]') for r in pr]
        g += [I(f'v_exp_f32 v{T+r}, v{T+r}') for r in range(4)]
        g += [pk('add', Pq[4] + r, Pq[4] + r, Pq[5] + r) for r in pr]
        g += [I(f'v_pk_add_f32 {v(T+r,2)}, {v(T+r,2)}, 1.0 op_sel_hi:[1,0]') for r in pr]
        g += [I(f'v_rcp_f32 v{T+r}, v{T+r}') for r in range(4)]
        g += [pk('mul', f + r, f + r, Pq[4] + r) for r in pr]
        g += [pk('fma', X + r, f + r, T + r, X + r) for r in pr]
        g += [I(f'v_cvt_pk_bf16_f32 v{xv + 2*p + r//2}, v{X+r}, v{X+r+1}') for r in pr]
        return g + [I(f'buffer_store_dwordx2 {v(xv + 2*p, 2)}, v{xo1 if p else xo}, s[{sOut}:{sOut+3}], 0 offen' + OUTSC[p])]
    def unpack(g):
        out = []
        for i in g:
            if not i.mn.startswith('v_pk_'): out.append(i); continue
            op = i.mn[5:8]
            for h in range(2):
                ops = [f'v{min(regs(x))[1] + h}' if x.startswith('v') else (f's{min(regs(x))[1]}' if x.startswith('s') else x) for x in i.ops[:4 if op == 'fma' else 3]]
                if op != 'fma': ops = [ops[0], ops[2], ops[1]]
                out.append(I(f'v_{op}_f32 ' + ', '.join(ops)))
        return out
    mid = fin_x(0) + unpack(fin_math(0)); km = (len(mid) + 2 * NM - 1) // (2 * NM)
    for n in range(2 * NT):
        p, t = divmod(n, NT)
        o += stamp(f'k{n}')
        if th == 0 and n == 15: o += [waitvm('U18')] + wread(wr, 18)
        if th == 1 and t == 16: o += [waitreg(af[(n + 1) % NA], 4), I(f's_bitcmp1_b32 s{sC}, 1'), I(f's_cbranch_scc0 {P}s{p}')]
        for nt in range(2):
            ab = [v(WREG[t][nt],4), v(af[n % NA],4)][::-1 if p else 1]
            o += [I(f'v_mfma_f32_32x32x16_bf16 {v(acc[nt],16)}, {ab[0]}, {ab[1]}, ' + (v(acc[nt],16) if t else '0'))]
            if p == 1 and t > RK[th]: o += mid[:km]; del mid[:km]
        if th == 1 and t == 15 and p == 1: assert not mid
        if th == 1 and t == 16: continue
        if th == 1 and t == 17: o += [I(f'{P}s{p}:')]
        o += more(n)
        if min(NES['A'][th], NES['B'][th]) <= n < 9: o += wread(wr, 9 + n)
        if n == 8 and th == 0: o += [waitreg(WREG[15][1], 4)] + w2_dma(R, th, 18, 0) + w2_dma(R, th, 18, 1)
        cr = f'ds_read_b32 v{t0}, v{zr} offset:{CNT + 8}'
        if p == 1 and t == RK[th] - 1: o += [I(cr)]
        if p == 1 and t == RK[th]:
            ck = [f'v_readfirstlane_b32 s{sa}, v{t0}', 's_nop 0', f's_cmp_ge_u32 s{sa}, 8']
            o += [I(x) for x in ck] + [I(f's_cbranch_scc1 {P}v'), I(f'{P}u:')] + [I('RAW ' + x) for x in ['s_sleep 1', cr, 's_waitcnt lgkmcnt(0)'] + ck + [f's_cbranch_scc0 {P}u']]
            o += [I(f'{P}v:')] + fin_read(0)
        if t == NT - 1: o += (stamp('mm') if p else []) + slab_write(p)
    assert not mid
    o += fin_x(1) + [I('s_waitcnt lgkmcnt(0)'), I('s_barrier')] + stamp('fin') + fin_read(1) + fin_math(1)
    if STAMP and PROBE >= 0:
        o += [I('s_waitcnt vmcnt(0)')] + stamp('end') + [I('s_memrealtime s[4:5]'), I('s_waitcnt lgkmcnt(0)'), I(f's_cmp_eq_u32 s2, {PROBE}'), I(f's_cbranch_scc0 {P}z'),
              I('s_sub_u32 s6, s72, s70'), I('s_min_u32 s6, s6, 5000'), I('s_lshl_b32 s6, s6, 3'), I(f'{P}y:'), I('s_memrealtime s[8:9]'), I('s_waitcnt lgkmcnt(0)'),
              I('s_sub_u32 s7, s8, s4'), I('s_cmp_lt_u32 s7, s6'), I(f's_cbranch_scc1 {P}y'), I(f'{P}z:')]
    elif STAMP:
        o += [I('s_waitcnt vmcnt(0)')] + stamp('end') + [I('s_waitcnt lgkmcnt(0)'), I(f's_lshl3_add_u32 s{sa}, s2, s{sW}'), I(f's_lshl_b32 s{sa}, s{sa}, 7'),
              I(f's_add_u32 s{sa}, s{sa}, {STAMP_OFF:#x}'), I(f'v_mov_b32 v{t0}, s{sa}'), I(f's_sub_u32 s{sWS}, s{sWS}, {WSO << 20}'), I(f's_subb_u32 s{sWS+1}, s{sWS+1}, 0')]
        for k in range(16):
            o += [I(f'v_mov_b32 v{t1}, s{70+2*k}'), I(f'global_store_dword v{t0}, v{t1}, s[{sWS}:{sWS+1}] offset:{4*k}')]
    return o + [I('s_endpgm')]

def stubs(st, name):
    sz = iter(sizes([i.text for i in st if i.kind != 'label']))
    out = []; off = 0; nxt = 4096; k = 0; bars = 0
    for i in st:
        if i.kind != 'label':
            if off >= nxt:
                out += [I(f'{name}w{k}:'), I(f's_cbranch_execz {name}w{k+1}'), I('s_nop 0')]; k += 1; off += 8
                nxt = (off // 4096 + 1) * 4096
            if i.mn == 's_barrier': bars += 1
            if bars >= 17: nxt = min(nxt, (off // WSTR + 1) * WSTR)
            off += next(sz)
        out.append(i)
    assert off <= 12288
    for i in out:
        if i.text == f's_cbranch_execz {name}w{k}': i.text = f's_cbranch_execz {name}r'
    return out

DOC = """; One persistent kernel, 256 workgroups (one per CU) x 8 waves; written by gen/gen12.py (hand-written generator).
;   16x16x32 MFMAs; x and weight slabs stream through LDS rings (LDS-DMA, transposing reads).  LayerNorm is folded in
;   and publishes them; column sums come from sparse MFMAs with ones.  Type A blocks (4 heads + 64 FFN columns) finish
"""

def main():
    assert KP[0] == 0 and sorted(KP) == list(range(8))
    assert CHK + 1 < 12 and CPI[1] < AT0 and STI > CHK + 1 and min(PI[1:]) >= 0 and all(x < 11 or x == 99 for x in PI)
    R, o = common()
    txt = text(finalize(o))
    pre = [Ins(i.text, i.tag) for i in o if i.kind == 'vmem']
    for typ in 'AB':
        for th in range(2):
            st = align8(finalize(pre + stream(R, typ, th))[len(pre):])
            txt += f'; ---- phase 1, type {typ}, token half {th} ----\n.p2align 12\n' + text(stubs(st, f'L_{typ}{th}') if WARM[th] < 99 else st)
    for th in range(2):
        txt += f'; ---- phase 2, waves {4*th}-{4*th+3} ----\n.p2align 12\n' + (f'L_P{th}wA:\n  s_branch L_A{th}w0\nL_P{th}wB:\n  s_branch L_B{th}w0\n' if WARM[th] < 99 else '') + text(align8(finalize(phase2(R, th))))
    hdr = open('cdna_kernels/' + NAME + '.s.ref').read().split('; Override launch')[0]
    n = NAME + '_kernel'
    s_ = hdr + DOC + '; @launch grid=(256,1,1) block=(512,1,1) lds=163840\n.amdgcn_target "amdgcn-amd-amdhsa--gfx950"\n.text\n'
    s_ += f'.globl {n}\n.p2align 8\n.type {n},@function\n{n}:\n{txt}L_end:\n.fill (66048 - (L_end - {n})) / 4, 4, 0xbf800000\n'
    s_ += f'''.section .rodata,"a"
.p2align 6
.amdhsa_kernel {n}
  .amdhsa_next_free_vgpr 256
  .amdhsa_next_free_sgpr 102
  .amdhsa_accum_offset 256
  .amdhsa_group_segment_fixed_size 0
  .amdhsa_kernarg_size 80
  .amdhsa_user_sgpr_count 2
  .amdhsa_user_sgpr_kernarg_segment_ptr 1
  .amdhsa_system_sgpr_workgroup_id_x 1
  .amdhsa_float_denorm_mode_32 3
.end_amdhsa_kernel
'''
    open(opt('-o', 'cdna_kernels/' + NAME + '.s'), 'w').write(s_)
main()
```

```python
import re

REG = re.compile(r'^(-|abs\()?([vas])(?:(\d+)|\[(\d+):(\d+)\])\)?$')

def regs(op):
    op = op.strip()
    if op in ('vcc',): return {('s', 106), ('s', 107)}
    if op == 'vcc_lo': return {('s', 106)}
    if op == 'vcc_hi': return {('s', 107)}
    if op == 'm0': return {('s', 124)}
    if op == 'exec': return {('s', 126), ('s', 127)}
    m = REG.match(op)
    if not m: return set()
    k = m.group(2)
    if m.group(3) is not None: return {(k, int(m.group(3)))}
    return {(k, i) for i in range(int(m.group(4)), int(m.group(5)) + 1)}

TRANS = ('v_exp_f32', 'v_log_f32', 'v_rcp_f32', 'v_rsq_f32', 'v_sqrt_f32', 'v_sin_f32', 'v_cos_f32')

class Ins:
    __slots__ = ('text', 'mn', 'ops', 'kind', 'dst', 'src', 'tag', 'passes', 'srcc', 'srcab', 'data')
    def __init__(self, text, tag=None):
        self.text = text; self.tag = tag
        assert not re.search(r'v_pk_.*op_sel:\[\d,1', text), text
        t = text.split(';')[0].strip()
        p = t.split(None, 1)
        self.mn = mn = p[0]
        rest = p[1] if len(p) > 1 else ''
        ops = [o.strip() for o in rest.split(',')] if rest else []
        ops2 = []
        for o in ops:
            ops2.append(o.split()[0] if o.split() else o)
        self.ops = ops2
        R = [regs(o) for o in ops2]
        U = lambda l: set().union(*l) if l else set()
        self.passes = 0; self.srcc = set(); self.srcab = set(); self.data = set()
        lds = bool(re.search(r'\blds\b', rest)) or 'load_lds' in mn
        if mn == 'RAW':
            self.kind = 'sym'; self.dst = set(); self.src = set(); self.text = rest
        elif mn.endswith(':') or mn.startswith('.'):
            self.kind = 'label'; self.dst = set(); self.src = set()
        elif mn.startswith('v_mfma') or mn.startswith('v_smfmac'):
            self.kind = 'mfma'; self.dst = R[0]
            self.passes = 8 if '32x32' in mn else 4
            if mn.startswith('v_smfmac'):
                self.srcc = R[0]; self.srcab = U(R[1:])
            else:
                self.srcc = R[3]; self.srcab = R[1] | R[2]
            self.src = self.srcc | self.srcab
        elif mn.startswith('v_'):
            self.kind = 'valu'
            if mn.startswith('v_permlane') or mn.startswith('v_swap'):
                self.dst = R[0] | R[1]; self.src = R[0] | R[1]
            elif mn.startswith(('v_fmac', 'v_dot2c', 'v_writelane')):
                self.dst = R[0]; self.src = U(R)
            elif mn.startswith(('v_add_co', 'v_addc_co', 'v_sub_co', 'v_subb_co', 'v_mad_u64')):
                self.dst = R[0] | R[1]; self.src = U(R[2:])
            else:
                self.dst = R[0]; self.src = U(R[1:])
        elif mn.startswith('ds_'):
            self.kind = 'ds'
            if 'read' in mn or 'permute' in mn or 'swizzle' in mn or '_rtn' in mn:
                self.dst = R[0]; self.src = U(R[1:])
            else:
                self.dst = set(); self.src = U(R)
        elif mn.startswith(('buffer_', 'global_')):
            self.kind = 'vmem'
            if mn in ('buffer_wbl2', 'buffer_inv'):
                self.dst = set(); self.src = set()
            elif lds:
                self.dst = set(); self.src = U(R) | {('s', 124)}
            elif 'load' in mn:
                self.dst = R[0]; self.src = U(R[1:])
            elif 'atomic' in mn and re.search(r'\bsc0\b', rest):
                self.dst = R[0]; self.src = U(R) if mn.startswith('buffer') else U(R[1:])
            else:
                self.dst = set(); self.src = U(R)
                if 'x4' in mn or 'x3' in mn:
                    self.data = R[0] if mn.startswith('buffer') else R[1]
        elif mn.startswith(('s_load', 's_buffer_load', 's_memtime', 's_memrealtime')):
            self.kind = 'smem'; self.dst = R[0]; self.src = U(R[1:])
        elif mn in ('s_waitcnt', 's_nop', 's_barrier', 's_endpgm', 's_setprio', 's_sleep') or mn.startswith(('s_cbranch', 's_branch')):
            self.kind = 'ctl'; self.dst = set(); self.src = set()
        elif mn.startswith(('s_cmp', 's_bitcmp')):
            self.kind = 'salu'; self.dst = set(); self.src = U(R)
        elif mn.startswith('s_'):
            self.kind = 'salu'; self.dst = R[0]; self.src = U(R[1:])
            if 'saveexec' in mn: self.dst |= regs('exec')
            if mn.startswith(('s_addk', 's_mulk')): self.src |= R[0]
        elif mn in ('WAITVM', 'WAITLGKM', 'FENCE'):
            self.kind = 'sym'; self.dst = set(); self.src = set()
        else:
            raise ValueError('unknown instr: ' + text)

def I(text, tag=None): return Ins(text, tag)
def waitvm(*tags):
    i = Ins('WAITVM'); i.tag = tags; return i
def waitlgkm0():
    return Ins('WAITLGKM')
def waitreg(r, n=1):
    i = Ins('FENCE'); i.src = {('v', k) for k in range(r, r + n)}; return i

def need_states(p, c):
    n = 0
    vd = {r for r in p.dst if r[0] != 's'}
    sd = {r for r in p.dst if r[0] == 's'}
    if p.kind == 'valu':
        if c.kind == 'mfma' and vd & c.src: n = max(n, 2)
        if c.kind == 'valu':
            if p.mn.startswith(TRANS) and vd & c.src: n = max(n, 1)
            if c.mn.startswith('v_permlane') and vd & c.src: n = max(n, 2)
            if '_dpp' in c.mn and vd & c.src: n = max(n, 2)
            if c.mn.startswith(('v_readlane', 'v_readfirstlane')) and vd & c.src: n = max(n, 1)
            if ('_sdwa' in p.mn or ('op_sel' in p.text and not p.mn.startswith('v_pk_'))) and vd & (c.src | c.dst): n = max(n, 1)
            if sd & c.src: n = max(n, 4 if 'lane' in c.mn else 2)
            if p.mn.startswith('v_dot') and vd & (c.src | c.dst) and c.mn != p.mn: n = max(n, 3)
        if c.kind == 'vmem' and sd & c.src: n = max(n, 5)
        if c.kind in ('salu', 'smem') and sd & c.src: n = max(n, 1)
    if p.kind == 'mfma':
        big = p.passes == 8
        if c.kind == 'mfma':
            if p.dst & c.srcc and not (p.dst == c.srcc and p.passes == c.passes): n = max(n, 10 if big else 6)
            if p.dst & c.srcab: n = max(n, 12 if big else 8)
            if p.dst & c.dst and not (p.dst & c.srcc): n = max(n, 10 if big else 6)
        elif c.kind in ('valu', 'ds', 'vmem'):
            if p.dst & (c.src | c.dst): n = max(n, 12 if big else 8)
            if c.kind == 'valu' and p.srcc & c.dst: n = max(n, 7 if big else 3)
    if p.kind == 'salu' and ('s', 124) in p.dst and c.kind == 'vmem' and ('s', 124) in c.src: n = max(n, 1)
    if p.kind == 'vmem' and p.data and p.data & c.dst: n = max(n, 2 if c.kind in ('valu', 'mfma') else 1)
    return n

def states(i):
    if i.mn == 's_nop': return int(i.ops[0]) + 1
    if i.kind in ('label', 'sym'): return 0
    return 1

def finalize(stream, name=''):
    out = []
    vm = []
    lg = []
    def younger(k):
        return sum(1 for t, _ in vm[k + 1:] if not (isinstance(t, str) and t.startswith('opt')))
    def emit_wait(nv=None, nl=None):
        parts = []
        if nv is not None:
            nv = min(nv, 63); parts.append(f'vmcnt({nv})')
            while vm and younger(0) >= nv: del vm[0]
        if nl is not None:
            nl = min(nl, 14); parts.append(f'lgkmcnt({nl})'); del lg[:max(0, len(lg) - nl)]
        if out and out[-1].mn == 's_waitcnt':
            prev = dict(re.findall(r'(vmcnt|lgkmcnt)\((\d+)\)', out[-1].text))
            cur = dict(re.findall(r'(vmcnt|lgkmcnt)\((\d+)\)', ' '.join(parts)))
            for k, v in cur.items(): prev[k] = str(min(int(v), int(prev.get(k, 99))))
            out[-1] = Ins('s_waitcnt ' + ' '.join(f'{k}({v})' for k, v in prev.items()))
        else:
            out.append(Ins('s_waitcnt ' + ' '.join(parts)))
    waited = set()
    for ins in stream:
        if ins.kind == 'vmem' and ins.tag is not None: assert ins.tag not in waited, f'{ins.tag} issued after its wait'
        if ins.mn == 'WAITVM':
            waited |= set(ins.tag)
            idx = [k for k, (t, _) in enumerate(vm) if t in ins.tag or 'ALL' in ins.tag]
            if idx: emit_wait(nv=younger(max(idx)))
            continue
        if ins.mn == 'WAITLGKM':
            if lg: emit_wait(nl=0)
            continue
        if ins.mn == 's_waitcnt':
            d = dict(re.findall(r'(vmcnt|lgkmcnt)\((\d+)\)', ins.text))
            emit_wait(nv=int(d['vmcnt']) if 'vmcnt' in d else None, nl=int(d['lgkmcnt']) if 'lgkmcnt' in d else None)
            continue
        touch = ins.src | ins.dst
        nv = nl = None
        idx = [k for k, (_, d) in enumerate(vm) if d & touch]
        if idx and not (ins.kind == 'vmem' and not (ins.src & set().union(*[vm[k][1] for k in idx]))):
            nv = younger(max(idx))
        idx = [k for k, (_, d) in enumerate(lg) if d & touch]
        if idx:
            nl = len(lg) - 1 - max(idx)
            if any(k == 'smem' for k, _ in lg): nl = 0
        if nv is not None or nl is not None: emit_wait(nv, nl)
        if ins.mn == 'FENCE': continue
        dist = 0; need = 0
        for p in reversed(out):
            if dist >= 20: break
            n = need_states(p, ins)
            if n > dist: need = max(need, n - dist)
            dist += states(p)
        while need > 0:
            k = min(need, 16); out.append(Ins(f's_nop {k - 1}')); need -= k
        out.append(ins)
        if ins.kind == 'vmem': vm.append((ins.tag, ins.dst))
        elif ins.kind == 'ds': lg.append(('ds', ins.dst))
        elif ins.kind == 'smem': lg.append(('smem', ins.dst))
        assert len(vm) <= 63 or True
    return out

def text(stream):
    return ''.join((i.text if i.kind == 'label' else '  ' + i.text) + '\n' for i in stream)

def interleave(main, fill, start=0, end=None):
    end = len(main) if end is None else end
    n = end - start
    out = []
    k = 0
    for j, m in enumerate(main):
        out.append(m)
        if start <= j < end:
            upto = (len(fill) * (j - start + 1) + n - 1) // n
            while k < upto:
                f = fill[k]; k += 1
                out.extend(f if isinstance(f, list) else [f])
    while k < len(fill):
        f = fill[k]; k += 1
        out.extend(f if isinstance(f, list) else [f])
    return out

class Alloc:
    def __init__(self, start, limit): self.n = start; self.limit = limit; self.hi = start
    def __call__(self, cnt=1, align=1):
        if cnt > 1 and align == 1: align = 2
        self.n = (self.n + align - 1) // align * align
        r = self.n; self.n += cnt; self.hi = max(self.hi, self.n)
        assert self.n <= self.limit, f'out of registers {self.n}'
        return r

def v(r, n=1): return f'v{r}' if n == 1 else f'v[{r}:{r + n - 1}]'
def s(r, n=1): return f's{r}' if n == 1 else f's[{r}:{r + n - 1}]'

import subprocess
_size = {}
def sizes(lines):
    todo = sorted({l for l in lines if l not in _size})
    simple = [l for l in todo if not l.split()[0].startswith(('s_cbranch', 's_branch'))]
    for l in todo:
        if l not in simple: _size[l] = 4
    if simple:
        r = subprocess.run(['llvm-mc', '-triple', 'amdgcn-amd-amdhsa', '-mcpu=gfx950', '-show-encoding'],
                           input='\n'.join(simple) + '\n', capture_output=True, text=True)
        enc = re.findall(r'encoding: \[(.*?)\]', r.stdout)
        assert len(enc) == len(simple), r.stderr[:500]
        for l, e in zip(simple, enc): _size[l] = len(e.split(','))
    return [_size[l] for l in lines]

PROMOTE = ('v_exp_f32', 'v_rcp_f32', 'v_mov_b32', 'v_max_f32', 'v_and_b32', 'v_or_b32', 'v_xor_b32', 'v_add_f32', 'v_mul_f32', 'v_add_u32', 'v_sub_u32',
           'v_lshlrev_b32', 'v_lshrrev_b32', 'v_ashrrev_i32', 'v_not_b32', 'v_sqrt_f32', 'v_subrev_u32', 'v_permlane16_swap_b32', 'v_permlane32_swap_b32')
def align8(stream):
    idx = [k for k, i in enumerate(stream) if i.kind != 'label']
    sz = dict(zip(idx, sizes([stream[k].text for k in idx])))
    off = 0; run = []
    for k in idx:
        if sz[k] == 4: run.append(k); off += 4; continue
        if off % 8:
            c = [j for j in run if stream[j].mn in PROMOTE and stream[j].kind == 'valu']
            if c:
                j = c[-1]; stream[j].text = stream[j].text.replace(stream[j].mn, stream[j].mn + '_e64', 1); off += 4
        run = []; off += sz[k]
    return stream
```

```python
import sys, copy
from asmlib import *

def opt(name, default):
    return type(default)(sys.argv[sys.argv.index(name) + 1]) if name in sys.argv else default
def optl(name, default): return [int(x) for x in opt(name, default).split(',')]
STAMP = '--stamp' in sys.argv
NAME = 'recurrent_scan__sliding_local_dilated__swiglu_ffn__prompt'
LOG2E = 0x3fb8aa3b
ACT_BYTES = 64 * 144 * 1024
FLAG_OFF = ACT_BYTES
STAT_OFF = FLAG_OFF + 131072
CPY_OFF = STAT_OFF + 32768
WS_BYTES = CPY_OFF + 2304 * 128
STAMP_OFF = 16 << 20
QUOTA = [optl('--q0', '5,3,3,3,3,3,3,4'), optl('--q1', '7,4,5,5,5,5,5,6')]
PI = optl('--pi', '-1,2,5,8')
PB = [1] + optl('--pb', '3,6') + [8]
EXM = opt('--exm', 8)
ATN = opt('--atn', 2); STI = opt('--sti', 13)
AT0 = opt('--at0', 4)
CHK = opt('--chk', 10)
CPY = opt('--cpy', 3)
CPI = optl('--cpi', '0,2')
NRD = optl('--nrd', '0,3')
NES = {'A': optl('--nea', '0,8'), 'B': optl('--neb', '0,8')}
SKS = {'A': optl('--ska', '3,0'), 'B': optl('--skb', '3,0')}
NAS = optl('--na', '8,6'); LAS = optl('--la1', '6,6')
RK = optl('--rk', '4,2'); NM = opt('--nm', 4)
P2PRIO = optl('--pp', '0,1'); LPRIO = optl('--lp', '1,2'); EPRIO = optl('--ep', '3,2')
PFPOS = opt('--pfpos', 2); SBI = [optl('--sb0', '2'), optl('--sb1', '2')]; W0 = optl('--w0', '10,0'); W1 = optl('--w1', '100,100'); FINP = opt('--finp', 9)
THRS = {'A': opt('--thra', 8), 'B': opt('--thrb', 7)}
THR0 = opt('--thr0', 0); CHAIN = opt('--chain', 1); PSW = opt('--psw', 12); SNK = opt('--snk', 1)
DIAG = int(opt('--diag', '0'), 16)
ROTC = int(opt('--rotc', 'ff'), 16)
KP = optl('--kp', '0,1,2,3,4,5,6,7'); GX = opt('--gx', 2); TOKL = opt('--tokl', 1)
OUTSC = opt('--outsc', ',').replace('_', ' ').split(',')
BN = opt('--bn', 3); BS = opt('--bs', 6); D16 = opt('--d16', 4); NOR2 = optl('--nor2', '99,99')
WARM = optl('--warm', '-1,-1'); WSTR = opt('--wstr', 4096)
WSO = 0
NAP = optl('--nap', '99,0')
ROWL = opt('--rowl', 1)
I0 = opt('--i0', 3)
CUT = opt('--cut', 0)
SKD = opt('--skd', 3)
HONES = opt('--hones', 1)
SLEEP = opt('--sleep', 3); SPIN = 0x40000
PROBE = opt('--probe', -1)
SC = ' sc1'; OOB = 0x40000000
PTS = opt('--pts', 'entry,s0,s8,s16,epi,go0,mm,end').split(',')
def stamp(name):
    if name not in PTS or not STAMP: return []
    k = PTS.index(name)
    return [I(f's_memrealtime s[{70+2*k}:{71+2*k}]'), I(f's_memtime s[{86+2*k}:{87+2*k}]')]

XBASE, XSLOT = 6144, 18432
WBASE, WSLOT = 61440, 20480
ST4, SMO, SRO, CSO, CNT = 0, 3072, 3840, 4608, 5888
_W1 = WBASE + WSLOT
PAIR = [XBASE + 36*1024, _W1, _W1 + 2*8192, _W1 + 4*8192, XBASE, _W1 + 6*8192, _W1 + 8*8192, XBASE + 16*1024, XBASE + 52*1024]
SLOT = [PAIR[:7] + [PAIR[6] + 4096] + PAIR[7:], PAIR[:6] + PAIR[7:]]
NU = [{12: 4, 13: 3, 14: 4, 15: 5, 16: 4}, {12: 4, 13: 3, 14: 4, 15: 1, 16: 4}]
KRAW, VRAW = XBASE + 16*1024, XBASE + 52*1024

sPF2, sFo, sNW, sDl, sPF1 = 0, 65, 4, 5, 6
SPLIT = [10, 8]
sDbg, sWo, sWd, sOut, sX, sA, sB, sCc, sWS = 36, 8, 16, 12, 20, 24, 28, 32, 40
pQ, pG, pU = 6, 12, 14
sW, sC, sRB, sIDX, sKa, sKg, sXo0, sXo1, sLW, sLX, sLH = range(44, 55)
sST = 55
sW2o, sSD, sHX = 60, 61, 62
sTYP, sTOK = 64, 63
sSH = sTYP
sa, sb, sc_, sd = 66, 67, 68, 69
sAr, sPoll, sL2E = sKa, 28, 56

class Regs: pass
def srd23(d, n): return [I(f's_mov_b32 s{d+2}, {n:#x}'), I(f's_mov_b32 s{d+3}, 0x20000')]
def flat(gs): return [i for g in gs for i in g]
def dma(voff, srdr, soff, ldsbase_s, ldsimm, tag, off=0):
    so = f's{soff}' if soff is not None else '0'
    return [I(f's_add_u32 m0, s{ldsbase_s}, {ldsimm - off}'),
            I(f'buffer_load_dwordx4 v{voff}, s[{srdr}:{srdr+3}], {so} offen' + (f' offset:{off}' if off else '') + ' lds', tag)]

def common():
    R = Regs()
    for k, n in enumerate('L L16 t0 t1 t2 one W2d xo av ex a4'.split()): setattr(R, n, 1 + k)
    R.wr = 12; R.gp = 16
    for k, n in enumerate('Xd Xh Va Vb Vc Xr0 Xr1 Wa Wb Ma Mb Sv s16 sg idx fs'.split()): setattr(R, n, 18 + k)
    R.ones = 34
    R.xr, R.s1, R.s2, R.u0, R.u1, R.p1, R.p2, R.at, R.junk, R.c1, R.c2, R.cv = 184, 188, 189, 190, 191, 174, 175, 176, 177, 178, 179, 192
    t0, t1, t2, u0, u1 = R.t0, R.t1, R.t2, R.u0, R.u1
    o = [I('s_cmp_ge_u32 s2, 256'), I('s_cbranch_scc1 L_exit')] + stamp('entry')
    o += [I(f's_load_dwordx2 s[{sX}:{sX+1}], s[0:1], 0'), I('s_load_dwordx16 s[4:19], s[0:1], 0'), I(f's_load_dwordx4 s[{sDbg}:{sDbg+3}], s[0:1], 64'),
          I(f'v_readfirstlane_b32 s{sW}, v0'), I(f'v_lshrrev_b32 v{t0}, 4, v0'), I(f'v_lshrrev_b32 v{u0}, 3, v0'),
          I(f's_bfe_u32 s{sa}, s2, 0x10002'), I(f's_bfe_u32 s{sb}, s2, 0x30003'), I(f's_lshl3_add_u32 s{sRB}, s{sa}, s{sb}'),
          I(f'v_bitop3_b32 v{t1}, v{t0}, v0, 7 bitop3:0x28'),
          I(f's_lshl_b32 s{sLX}, s{sW}, 4'), I(f's_lshl_b32 s{sXo0}, s{sRB}, 17'), I(f'v_lshlrev_b32 v{t1}, 4, v{t1}'),
          ] + ([I(f's_and_b32 s{sa}, s2, 3'), I(f's_lshr_b32 s{sb}, s2, 6'), I(f's_lshl2_add_u32 s{sa}, s{sa}, s{sb}'), I(f's_lshl_b32 s{sa}, s{sa}, 13'), I(f's_add_u32 s{sTOK}, s{sa}, s{sXo0}')]
               if TOKL else [I(f's_lshl_b32 s{sTOK}, s2, 13')]) + [I(f'v_lshlrev_b32 v{R.L16}, 4, v0'), I(f'v_lshl_add_u32 v{R.Xd}, v{u0}, 10, v{t1}')] + srd23(sX, 2048 * 1024)
    o += [I(f's_getpc_b64 s[{sa}:{sa+1}]'), I(f's_lshr_b32 s{sc_}, s2, 3'), I(f's_lshl_b32 s{sc_}, s{sc_}, 4'), I(f'v_lshrrev_b32 v{t2}, 5, v0'),
          I(f'v_add_lshl_u32 v{t1}, v{t2}, s{sc_}, 7'), I(f'global_load_dword v{R.junk}, v{t1}, s[{sa}:{sa+1}]', 'pf'),
          I(f's_add_u32 s{sXo1}, s{sXo0}, 0x10000'), I(f's_add_u32 m0, s{sLX}, {XBASE + 2048}'), I('s_waitcnt lgkmcnt(0)')] + stamp('karg')
    row = [I(f'buffer_load_dwordx4 {v(R.xr,4)}, v{R.L16}, s[{sX}:{sX+3}], s{sTOK} offen', 'row')]
    if not ROWL: o += row
    o += dma(R.Xd, sX, sXo0, sLX, XBASE + 2048, 'X0')[1:] + dma(R.Xd, sX, sXo1, sLX, XBASE + 2048 + 8192, 'X0')
    pa, pb, ca, cb, cc_ = sST, sST + 1, sST + 2, sST + 3, sST + 4
    o += [I(f'v_and_b32 v{t0}, 4, v{t0}'), I(f's_lshr_b32 s{sW}, s{sW}, 6'), I(f'v_and_or_b32 v{t0}, v{u0}, 2, v{t0}'),
          I(f's_and_b32 s{sa}, s2, 3'), I(f's_lshr_b32 s{sb}, s2, 7'), I(f's_lshl1_add_u32 s{sIDX}, s{sa}, s{sb}'),
          I(f'v_bitop3_b32 v{t0}, v{t0}, v0, 7 bitop3:0x28'), I(f's_and_b32 s{sC}, s{sW}, 3'), I(f's_lshl_b32 s{sLW}, s{sC}, 10'),
          I(f'v_lshlrev_b32 v{t0}, 4, v{t0}'), I(f'v_and_b32 v{u1}, 31, v{u0}'),
          I(f's_mov_b32 s{sA+3}, 0x20000'), I(f's_mov_b32 s{sB+3}, 0x20000'), I(f's_movk_i32 s{sc_}, 3584'), I(f's_lshr_b32 s{sLH}, s{sW}, 2'),
          I('s_bitcmp1_b32 s2, 6'), I('s_cbranch_scc1 L_pB'),
          I(f's_movk_i32 s{pa}, 3072'), I(f's_lshl_b32 s{sa}, s{sIDX}, 7'), I(f's_xor_b32 s{cc_}, s{sa}, {GX * 128}'), I(f's_add_u32 s{cc_}, s{cc_}, 2560'), I(f's_add_u32 s{cb}, s{sa}, 1024'),
          I(f's_lshl_b32 s{sb}, s{sLH}, 11'), I(f's_add_u32 s{ca}, s{sa}, s{sb}'),
          I(f's_cmp_eq_u32 s{sLH}, 0'), I(f's_cselect_b32 s{pb}, s{pa}, s{sc_}'), I(f's_cselect_b32 s{cb}, s{cb}, s{cc_}'),
          I(f's_cselect_b64 s[{sB}:{sB+1}], s[{pQ}:{pQ+1}], s[{pG}:{pG+1}]'), I(f's_mov_b64 s[{sA}:{sA+1}], s[{pQ}:{pQ+1}]'),
          I('s_branch L_pJ'),
          I('L_pB:'),
          I(f's_mov_b32 s{pa}, s{sc_}'), I(f's_mov_b32 s{pb}, s{sc_}'), I(f's_mul_i32 s{sa}, s{sIDX}, 320'),
          I(f's_bitcmp1_b32 s{sIDX}, 0'), I(f's_cselect_b32 s{ca}, 64, 0'), I(f's_cselect_b32 s{cc_}, 0, 256'),
          I(f's_add_u32 s{ca}, s{ca}, s{sa}'), I(f's_add_u32 s{cc_}, s{cc_}, s{sa}'), I(f's_add_u32 s{cb}, s{ca}, 128'),
          I(f's_cmp_eq_u32 s{sLH}, 0'),
          I(f's_cselect_b64 s[{sA}:{sA+1}], s[{pG}:{pG+1}], s[{pU}:{pU+1}]'), I(f's_cselect_b64 s[{sB}:{sB+1}], s[{pG}:{pG+1}], s[{pU}:{pU+1}]'),
          I('L_pJ:'),
          I(f'v_mad_u32_u24 v{R.Va}, v{u1}, s{pa}, v{t0}'), I(f'v_mad_u32_u24 v{R.Vb}, v{u1}, s{pb}, v{t0}'),
          I(f's_lshl_b32 s{sA+2}, s{pa}, 9'), I(f's_lshl_b32 s{sB+2}, s{pb}, 9'), I(f's_lshl_b32 s{sa}, s{sLH}, 13'), I(f's_add_u32 s{sa}, s{sa}, s{sLW}')]
    o += dma(R.Va, sA, ca, sa, WBASE, 'W0') + dma(R.Vb, sB, cb, sa, WBASE + 4096, 'W0') + (row if ROWL else [])
    o += [I(f'v_add_u32 v{R.Va}, s{ca}, v{R.Va}'), I(f'v_add_u32 v{R.Vb}, s{cb}, v{R.Vb}'), I(f'v_and_b32 v{R.L}, 63, v0')] + stamp('dma0')
    o += [I('s_bitcmp1_b32 s2, 6'), I('s_cbranch_scc1 L_B'), I(f's_cmp_eq_u32 s{sLH}, 0'), I('s_cbranch_scc0 L_A1'), I('s_branch L_A0'),
          I('L_B:'), I(f's_cmp_eq_u32 s{sLH}, 0'), I('s_cbranch_scc0 L_B1'), I('s_branch L_B0'),
          I('L_exit:'), I('s_endpgm')]
    return R, o

def halo_dma(R, S):
    g = dma(R.Xh, sX, None, sLH, XBASE + (S % 3) * XSLOT, f'X{S}', KP[S] * 128)
    return [g[0], I(f's_mov_b32 exec_lo, s{sHX}'), I('s_mov_b32 exec_hi, 0'), g[1], I('s_mov_b64 exec, -1')]

def first_loads(R, typ, th):
    if th == 0: return []
    L, t0, t1, t2, u0, u1, cc_ = R.L, R.t0, R.t1, R.t2, R.u0, R.u1, sST + 4
    o = srd23(sCc, 512 * 3584)
    if typ == 'A':
        o += [I(f's_mov_b64 s[{sCc}:{sCc+1}], s[{pU}:{pU+1}]')] + dma(R.Vb, sCc, None, sLW, WBASE + 16384, 'W0')
        o += [I(f'v_lshrrev_b32 v{t0}, 3, v{L}'), I(f's_lshl_b32 s{sa}, s{sC}, 2'), I(f'v_add_u32 v{t0}, s{sa}, v{t0}'),
              I(f'v_lshrrev_b32 v{t1}, 1, v{t0}'), I(f'v_bitop3_b32 v{t1}, v{t1}, v{L}, 7 bitop3:0x28'), I(f'v_lshlrev_b32 v{t1}, 4, v{t1}'),
              I(f'v_lshl_add_u32 v{t0}, v{t0}, 10, v{t1}'), I(f's_sub_u32 s{sb}, s{sXo0}, 0x4000'), I(f's_cselect_b32 s{sb}, {OOB}, s{sb}'),
              I(f'v_add_u32 v{R.Xh}, s{sb}, v{t0}'), I(f's_lshl_b32 s{sLH}, s{sC}, 9'),
              I(f's_cmp_eq_u32 s{sC}, 0'), I(f's_cselect_b32 s{sHX}, {0xffffff00 if HONES else -1}, -1'), ] + halo_dma(R, 0)
    else:
        o += [I(f'v_bitop3_b32 v{t2}, v{t2}, v0, 3 bitop3:0x28'), I(f'v_lshl_add_u32 v{t2}, v{t2}, 4, s{cc_}'),
              I(f'v_bfe_u32 v{t1}, v0, 2, 4'), I(f'v_and_or_b32 v{t1}, v{u0}, 16, v{t1}'), I(f'v_mad_u32_u24 v{R.Vc}, v{t1}, s{sc_}, v{t2}'),
              I(f's_bitcmp1_b32 s{sC}, 0'), I(f's_cselect_b64 s[{sCc}:{sCc+1}], s[{pU}:{pU+1}], s[{pG}:{pG+1}]')] + dma(R.Vc, sCc, None, sLW, WBASE + 16384, 'W0')
    return o

def pf_mine(typ, th, k): return PI[k] < 99 and (th == k & 1 or (typ == 'A' and EXM >> k & 1))
def pf_load(R, typ, th, k):
    base = sPF2 if k == 3 else sPF1
    ld = f'global_load_dword v{R.junk}, v{208 + k}, s[{base}:{base+1}]'
    if typ == 'A' and EXM >> k & 1: return [I('s_bitcmp1_b32 s2, 7'), I(f's_cbranch_scc1 L_A{th}p{k}'), I('RAW ' + ld), I(f'L_A{th}p{k}:')]
    return [I(ld)]
def pf_offset(R, typ, th, k):
    if not pf_mine(typ, th, k): return []
    L, d, t0 = R.L, 208 + k, R.t0
    o = [I(f's_or_b32 s{sb}, s2, {0 if th == k & 1 else 128}')]
    if k < 3:
        S0, n = PB[k], PB[k + 1] - PB[k]
        return o + [I(f's_cmp_eq_u32 s{sC}, 0'), I(f's_cselect_b32 s{sa}, 6, 7'), I(f's_mul_i32 s{sb}, s{sb}, {n}'), I(f's_add_u32 s{sb}, s{sb}, {256 * S0}'), I(f's_mul_i32 s{sb}, s{sb}, s{sa}'),
                    I(f's_mul_i32 s{sa}, s{sa}, {n}'), I(f's_sub_u32 s{sa}, s{sa}, 1'), I(f's_cmp_eq_u32 s{sC}, 3'), I(f's_cselect_b32 s{sa}, 0, s{sa}'),
                    I(f'v_min_u32 v{d}, s{sa}, v{L}'), I(f'v_add_lshl_u32 v{d}, v{d}, s{sb}, 7')]
    return o + [I(f's_sub_u32 s{sd}, s{sC}, 1'), I(f's_cselect_b64 s[{sPF2}:{sPF2+1}], s[{sWo}:{sWo+1}], s[{sWd}:{sWd+1}]'),
                I(f's_cselect_b32 s{sc_}, 16, 56'), I(f's_cselect_b32 s{sd}, 0, s{sd}'), I(f's_mul_i32 s{sd}, s{sd}, 19'),
                I(f'v_min_u32 v{d}, 18, v{L}'), I(f'v_add_u32 v{d}, s{sd}, v{d}'), I(f's_sub_u32 s{sd}, s{sc_}, 1'), I(f'v_min_u32 v{d}, s{sd}, v{d}'),
                I(f's_mul_i32 s{sc_}, s{sc_}, s{sb}'), I(f'v_and_b32 v{t0}, 7, v{d}'), I(f'v_cmp_eq_u32 vcc, {CPY}, v{t0}'), I(f'v_add_lshl_u32 v{d}, v{d}, s{sc_}, 7'),
                I(f'v_xor_b32 v{t0}, 128, v{d}'), I(f'v_cndmask_b32 v{d}, v{d}, v{t0}, vcc')]

def setup_a(R, typ, th):
    L, t0, t1, t2, u0, u1 = R.L, R.t0, R.t1, R.t2, R.u0, R.u1
    o = [I(f's_mov_b32 s{sKa}, 0'), I(f's_mov_b32 s{sKg}, 0'), I(f'v_lshlrev_b32 v{R.L16}, 4, v{L}'),
         I(f's_cmp_eq_u32 s{sC}, 0'), I(f's_cselect_b64 s[6:7], s[{pQ}:{pQ+1}], s[{pG}:{pG+1}]'),
         I(f's_cmp_eq_u32 s{sC}, 2'), I(f's_cselect_b64 s[6:7], s[{pU}:{pU+1}], s[6:7]')] + pf_offset(R, typ, th, 0)
    R.na = len(o)
    o += [I(f'v_and_b32 v{R.a4}, 15, v{L}'), I(f'v_lshrrev_b32 v{t1}, 4, v{L}'), I(f'v_bfe_u32 v{u0}, v{L}, 1, 3'),
          I(f'v_xor_b32 v{u0}, v{u0}, v{t1}'), I(f'v_lshlrev_b32 v{u0}, 4, v{u0}'), I(f'v_lshl_add_u32 v{R.Xr0}, v{R.a4}, 7, v{u0}'),
          I(f'v_xor_b32 v{R.Xr1}, 64, v{R.Xr0}'),
          I(f'v_bfe_u32 v{u0}, v{L}, 3, 2'), I(f'v_xor_b32 v{u0}, s{sC}, v{u0}'), I(f'v_lshlrev_b32 v{u0}, 5, v{u0}'),
          I(f'v_lshl_add_u32 v{u0}, v{t1}, 10, v{u0}'), I(f'v_bfe_u32 v{u1}, v{L}, 2, 2'), I(f'v_lshl_add_u32 v{u0}, v{u1}, 7, v{u0}'),
          I(f'v_and_b32 v{t0}, 3, v{L}'), I(f'v_lshl_add_u32 v{u0}, v{t0}, 3, v{u0}'),
          I(f'v_add_u32 v{R.Wa}, {WBASE}, v{u0}'), I(f'v_add_u32 v{R.Wb}, {WBASE + 3*WSLOT}, v{u0}')]
    if typ == 'B':
        o += [I(f'v_bfe_u32 v{u0}, v{L}, 4, 1'), I(f'v_and_b32 v{t0}, 2, v{L}'), I(f'v_or_b32 v{t2}, v{u0}, v{t0}'),
              I(f'v_xor_b32 v{t2}, s{sC}, v{t2}'), I(f'v_lshlrev_b32 v{t2}, 4, v{t2}'),
              I(f'v_lshl_add_u32 v{t2}, v{t0}, 9, v{t2}'), I(f'v_lshl_add_u32 v{t2}, v{u0}, 9, v{t2}'),
              I(f'v_lshl_add_u32 v{t2}, v{u1}, 6, v{t2}'), I(f'v_lshrrev_b32 v{u0}, 5, v{L}'), I(f'v_lshl_add_u32 v{t2}, v{u0}, 11, v{t2}'),
              I(f'v_and_b32 v{u0}, 1, v{L}'), I(f'v_lshl_add_u32 v{t2}, v{u0}, 3, v{t2}'),
              I(f'v_add_u32 v{R.Ma}, {WBASE}, v{t2}'), I(f'v_add_u32 v{R.Mb}, {WBASE + 3*WSLOT}, v{t2}')]
    for j in range(4): o.append(I(f'v_mov_b32 v{R.ones + j}, 0x3f803f80'))
    if typ == 'A' and th == 1 and HONES:
        o += [I(f'v_and_b32 v{t0}, 0x70, v{R.L16}')] + [I(f'ds_write_b128 v{t0}, {v(R.ones,4)} offset:{XBASE + k*XSLOT}') for k in range(3)]
    for p in R.csp:
        for j in range(4): o.append(I(f'v_mov_b32 v{R.cs[p] + j}, 0'))
    if th == 0: o += [I(f'v_bfe_i32 v{R.idx}, v{L}, 0, 1'), I(f'v_and_b32 v{R.idx}, 0xaaaaaaaa, v{R.idx}'), I(f'v_or_b32 v{R.idx}, 0x44444444, v{R.idx}')]
    o += [I(f's_add_u32 s{sWS}, s{sDbg+2}, {WSO << 20}'), I(f's_addc_u32 s{sWS+1}, s{sDbg+3}, 0'), I(f's_mov_b64 s[{sOut}:{sOut+1}], s[18:19]')]
    o += srd23(sWS, WS_BYTES) + srd23(sDbg, 256) + srd23(sWo, 512 * 1024) + srd23(sWd, 1792 * 1024) + srd23(sOut, 2048 * 1024)
    return o

def setup_b(R, typ, th):
    L, L16, t0, t1, t2, wr = R.L, R.L16, R.t0, R.t1, R.t2, R.wr
    sCT, sTB = sW2o, sSD
    o = [I(f's_and_b32 s{sa}, s2, 7'), I(f's_bfe_u32 s{sb}, s2, 0x20003'), I(f's_lshl2_add_u32 s{sa}, s{sa}, s{sb}'), I(f's_lshr_b32 s{sCT}, s2, 5'),
         I(f's_and_b32 s{sb}, s{sa}, 30'), I(f's_add_u32 s{sTB}, s{sa}, s{sb}'),
         I(f's_lshl3_add_u32 s{sa}, s{sa}, s{sCT}'), I(f's_lshl_b32 s{sa}, s{sa}, 9'), I(f's_add_u32 s{sTYP}, s{sa}, {FLAG_OFF + th*256}'),
         I(f's_lshl_b32 s{sa}, s{sC}, 28'), I(f'v_lshl_add_u32 v{t0}, v{L}, 2, s{sa}'), I(f'v_mov_b32 v{R.s1}, 0'), I(f'v_mov_b32 v{R.s2}, 0'),
         I(f'buffer_store_dword v{R.s1}, v{t0}, s[{sWS}:{sWS+3}], s{sTYP} offen{SC}', 'rst'),
         I(f'ds_write_b32 v{R.s1}, v{R.s1} offset:{CNT + 4*th}')] + ([I(f'ds_write_b32 v{R.s1}, v{R.s1} offset:{CNT + 8}')] if th else [])
    if th == 1:
        o += [I(f's_bitcmp1_b32 s{sC}, 1'), I(f's_cselect_b64 s[{sWo}:{sWo+1}], s[{sWd}:{sWd+1}], s[{sWo}:{sWo+1}]'), I(f's_cselect_b32 s{sWo+2}, s{sWd+2}, s{sWo+2}'),
              I(f's_cselect_b32 s{sb}, 7, 2'), I(f's_cselect_b32 s{sDl}, 512, 0'), I(f'v_lshrrev_b32 v{t0}, 3, v{L}'), I(f'v_cmp_gt_u32 vcc, s{sb}, v{t0}'),
              I(f's_mul_i32 s{sb}, s{sb}, s2'), I(f'v_add_u32 v{t0}, s{sb}, v{t0}'), I(f'v_and_b32 v{t1}, 0x70, v{L16}'), I(f'v_lshl_add_u32 v{R.c1}, v{t0}, 10, v{t1}'),
              I(f'v_add_u32 v{t0}, s{sDl}, v{t0}'), I(f'v_lshl_add_u32 v{R.c2}, v{t0}, 7, v{t1}'), I(f's_bitcmp1_b32 s{sC}, 0'), I(f's_cselect_b64 vcc, 0, vcc'), I(f'v_mov_b32 v{t1}, {OOB}'),
              I(f'v_add_u32 v{R.c2}, {CPY_OFF}, v{R.c2}'), I(f'v_cndmask_b32 v{R.c1}, v{t1}, v{R.c1}, vcc'), I(f'v_cndmask_b32 v{R.c2}, v{t1}, v{R.c2}, vcc')]
        o += [I(f's_and_b32 s{sb}, s{sIDX}, 3'), I(f's_lshl_b32 s{sb}, s{sb}, 6'), I(f's_add_u32 s{sb}, s{sb}, 256'), I(f'v_subrev_u32 v{R.at}, s{sb}, v0'),
              I(f's_lshl_b32 s{sb}, s{sRB}, 4'), I(f'v_lshl_add_u32 v{R.at}, v{R.at}, 22, s{sb}')]
    o += [I(f'v_mov_b32 v{R.one}, 1')]
    for k in (1, 2, 3):
        if PI[k] <= max(SBI[th]): o += pf_offset(R, typ, th, k)
    early = len(o)
    for k in (1, 2, 3):
        if PI[k] > max(SBI[th]): o += pf_offset(R, typ, th, k)
    o += [I(f's_lshl_b32 s{sa}, s{sRB}, 13'), I(f's_lshl2_add_u32 s{sa}, s{sIDX}, s{sa}'), I(f's_add_u32 s{sa}, s{sa}, {FLAG_OFF + th*128 + (256 if typ == "A" else 0)}'),
          I(f'v_lshl_add_u32 v{R.fs}, v{R.a4}, 9, s{sa}'), I(f'v_lshrrev_b32 v{t0}, 4, v{L}'), I(f'v_lshl_add_u32 v{R.fs}, v{t0}, 28, v{R.fs}')]
    o += [I(f's_mul_i32 s{sa}, s{sRB}, {4*144*1024}')] + ([I(f's_add_u32 s{sa}, s{sa}, {2*144*1024}')] if th else [])
    if typ == 'A':
        o += [I(f's_add_u32 s{sa}, s{sa}, s{sLW}'), I(f's_lshl_b32 s{sb}, s{sIDX}, 12'), I(f's_add_u32 s{sST+2}, s{sa}, s{sb}'),
              I(f's_xor_b32 s{sb}, s{sb}, {GX * 4096}'), I(f's_add_u32 s{sST}, s{sa}, s{sb}'), I(f's_add_u32 s{sST}, s{sST}, {(32+80)*1024}')]
    else:
        o += [I(f's_mul_i32 s{sb}, s{sIDX}, {320*32}'), I(f's_add_u32 s{sa}, s{sa}, s{sb}'), I(f's_add_u32 s{sa}, s{sa}, 0x8000'),
              I(f's_bitcmp1_b32 s{sIDX}, 0'), I(f's_cselect_b32 s{sb}, 2048, 0'), I(f's_cselect_b32 s{sc_}, 0, 8192'),
              I(f's_add_u32 s{sST}, s{sa}, s{sb}'), I(f's_add_u32 s{sST}, s{sST}, s{sLW}'), I(f's_add_u32 s{sST+2}, s{sST}, 4096'),
              I(f's_add_u32 s{sa}, s{sa}, s{sc_}'), I(f's_lshl_b32 s{sb}, s{sC}, 9'), I(f's_add_u32 s{sST+4}, s{sa}, s{sb}')]
    o += [I(f's_add_u32 s{sST+1}, s{sST}, {144*1024}'), I(f's_add_u32 s{sST+3}, s{sST+2}, {144*1024}')]
    if th == 0:
        o += [I(f's_mul_i32 s{sd}, s{sC}, 20'), I(f's_add_u32 s{sc_}, s{sd}, 32'), I(f's_lshl3_add_u32 s{sFo}, s{sC}, s{sTYP}')]
    else:
        o += [I(f's_and_b32 s{sb}, s{sC}, 1'), I(f's_lshl4_add_u32 s{sFo}, s{sb}, s{sTYP}'),
              I(f's_bitcmp1_b32 s{sC}, 1'), I(f's_cselect_b32 s{sb}, 48, 0'), I(f's_cselect_b32 s{sc_}, 32, 0'),
              I(f's_lshl4_add_u32 s{sd}, s{sC}, s{sb}'), I(f's_add_u32 s{sc_}, s{sc_}, s{sd}')]
    o += [I(f's_lshr_b32 s{sb}, {ROTC}, s{sCT}'), I(f's_and_b32 s{sb}, s{sb}, s{sTB}'), I(f's_bitcmp1_b32 s{sb}, 0'), I(f's_cselect_b32 s{sa}, {SPLIT[th]}, 0'),
          I(f's_cselect_b32 s{sDl}, {-SPLIT[th]}, {SPLIT[th]}'), I(f's_add_u32 s{sd}, s{sd}, s{sa}'), I(f's_add_u32 s{sc_}, s{sc_}, s{sa}'), I(f's_lshl_b32 s{sDl}, s{sDl}, 2')]
    o += [I(f's_mul_i32 s{sa}, s{sTB}, 144'), I(f's_add_u32 s{sa}, s{sa}, s{sc_}'), I(f's_lshl_b32 s{sa}, s{sa}, 10'),
          I(f'v_and_b32 v{t0}, 0x300, v{L16}'), I(f'v_add3_u32 v{R.av}, v{t0}, v{L16}, s{sa}'),
          I(f'v_lshrrev_b32 v{t1}, 3, v{L}'), I(f'v_and_b32 v{t0}, 6, v{t1}'), I(f'v_bitop3_b32 v{t0}, v{t0}, v{L}, 7 bitop3:0x28'),
          I(f'v_lshlrev_b32 v{t0}, 4, v{t0}'), I(f'v_and_b32 v{t2}, 4, v{t1}'), I(f'v_add_u32 v{t1}, v{t1}, v{t2}'),
          I(f's_lshl_b32 s{sCT}, s{sCT}, 7'), I(f's_lshl_b32 s{sd}, s{sd}, 14'), I(f's_add_u32 s{sd}, s{sd}, s{sCT}'),
          I(f's_lshl_b32 s{sc_}, s{sc_}, 11'), I(f's_add_u32 s{sc_}, s{sc_}, {CPY_OFF}'),
          I(f's_cmp_eq_u32 s{sCT}, {CPY * 128}'), I(f's_cselect_b32 s{sd}, s{sc_}, s{sd}'), I(f's_cselect_b32 s{sSH}, 9, 12'), I(f's_cselect_b32 s{sb}, 7, 10'),
          I(f'v_lshl_add_u32 v{t0}, v{t1}, s{sb}, v{t0}'), I(f'v_add_u32 v{R.W2d}, s{sd}, v{t0}'),
          I(f'v_lshrrev_b32 v{t0}, 4, v0'), I(f'v_lshlrev_b32 v{t1}, 3, v{R.a4}'), I(f'v_lshl_add_u32 v{t0}, v{t0}, 10, v{t1}'),
          I(f's_lshl_b32 s{sa}, s{sTB}, 15'), I(f's_add_u32 s{sa}, s{sa}, s{sCT}'), I(f'v_add_u32 v{R.xo}, s{sa}, v{t0}'),
          I(f'v_lshrrev_b32 v{t0}, 5, v{L}'), I(f'v_lshl_add_u32 v{t0}, v{t0}, 13, s{sLX}'), I(f'v_bfe_u32 v{t1}, v{L}, 2, 3'), I(f'v_lshl_add_u32 v{t0}, v{t1}, 7, v{t0}'),
          I(f'v_bfe_u32 v{t1}, v{L}, 3, 2'), I(f'v_lshl_add_u32 v{t0}, v{t1}, 5, v{t0}'), I(f'v_and_b32 v{t1}, 3, v{L}'), I(f'v_lshl_add_u32 v{wr}, v{t1}, 3, v{t0}')]
    o += [I(f'v_xor_b32 v{wr+p}, {32*p}, v{wr}') for p in (1, 2, 3)]
    o += [I(f'v_add_u32 v{WIN[k][0]+p}, {WIN[k][1]}, v{wr+p}') for k in range(1, 3 - th) for p in range(4)]
    if th == 1:
        o += [I(f's_lshl_b32 s{sa}, s{sRB}, 11'), I(f's_sub_u32 s{sa}, s{sa}, 256'), I(f's_cselect_b32 s{sb}, 256, 0') if typ == 'A' else I(f's_movk_i32 s{sb}, 256'),
              I(f's_add_u32 s{sa}, s{sa}, {STAT_OFF}'), I(f's_min_u32 s{sSD}, s{sLW}, 2048'), I(f'v_add_u32 v{R.Sv}, s{sSD}, v{L16}'), I(f'v_subrev_u32 v{t0}, s{sb}, v{R.Sv}'),
              I(f'v_add_u32 v{R.Sv}, s{sa}, v{R.Sv}'), I(f's_sub_u32 s{sb}, 2304, s{sb}'), I(f'v_cmp_gt_u32 vcc, s{sb}, v{t0}'), I(f'v_mov_b32 v{t1}, {OOB}'),
              I(f'v_cndmask_b32 v{R.Sv}, v{t1}, v{R.Sv}, vcc')]
    o += [I(f's_lshl_b32 s{sa}, s{sC}, 6'), I(f'v_lshlrev_b32 v{R.s16}, 4, v{R.a4}'), I(f'v_lshl_add_u32 v{t2}, v{R.a4}, 2, s{sa}'),
          I(f'v_and_b32 v{R.sg}, 0x30, v{L}'), I(f'v_add_u32 v{t0}, s{sa}, v{R.sg}')]
    if typ == 'A': o += [I(f's_lshl_b32 s{sa}, s{sC}, 9'), I(f'v_lshl_add_u32 v{R.ex}, v{L}, 3, s{sa}')]
    else: o += [I(f'v_and_b32 v{t1}, 0x200, v{L16}'), I(f'v_add_u32 v{t1}, v{t1}, v{R.s16}'),
                I(f'v_lshrrev_b32 v{R.ex}, 5, v{L}'), I(f'v_mul_u32_u24 v{R.ex}, {144*1024 - 512}, v{R.ex}'), I(f'v_add_u32 v{R.ex}, v{R.ex}, v{L16}')]
    u0, u1 = 182, 183
    o += [I(f'v_lshrrev_b32 v{u0}, 3, v{L}'), I(f'v_and_b32 v{u0}, 6, v{u0}'), I(f's_movk_i32 s{sa}, 0x9c'), I(f'v_lshrrev_b32 v{u0}, v{u0}, s{sa}'), I(f'v_lshrrev_b32 v{u1}, 2, v{L}'),
          I(f'v_bitop3_b32 v{R.gp}, v{u0}, v{u1}, 3 bitop3:0x28'), I(f'v_lshrrev_b32 v{u1}, 4, v0'), I(f'v_lshlrev_b32 v{u0}, 2, v{R.gp}'), I(f'v_sub_u32 v{u0}, v{u0}, v{u1}'),
          I(f's_add_u32 s{sa}, s{sC}, {64 + 16*th}'), I(f'v_add_u32 v{u0}, s{sa}, v{u0}'), I(f'v_lshl_add_u32 v{R.a4}, v{u0}, 10, v{R.xo}')]
    return o[:early], o[early:]

def bf16r(d, src):
    return [I(f'v_cvt_pk_bf16_f32 v{d}, v{src}, v{src}'), I(f'v_and_b32 v{d}, 0xffff0000, v{d}')]

def row_stats(R):
    a1, a2, T, f, y = R.s1, R.s2, R.xr, R.xr, 200
    t = a2; u = R.u1
    def wave_sum(a):
        return [I(f'v_add_f32_dpp v{a}, v{a}, v{a} row_ror:{k} row_mask:0xf bank_mask:0xf') for k in (8, 4, 2, 1)] + flat(
            [I(f'v_mov_b32 v{u}, v{a}'), I(f'v_permlane{w}_swap_b32 v{a}, v{u}'), I(f'v_add_f32 v{a}, v{a}, v{u}')] for w in (16, 32)) + [I(f'v_mul_f32 v{a}, 0x3b000000, v{a}')]
    o = flat([I(f'v_lshlrev_b32 v{y+2*d}, 16, v{f+d}'), I(f'v_and_b32 v{y+2*d+1}, 0xffff0000, v{f+d}')] for d in range(4))
    o += [pk('add', T, y, y + 2), pk('add', T + 2, y + 4, y + 6), pk('add', T, T, T + 2), I(f'v_add_f32 v{a1}, v{T}, v{T+1}'),
          I(f's_add_u32 s{sTOK}, s{sTOK}, s{sLX}'), I(f's_lshr_b32 s{sTOK}, s{sTOK}, 6')] + wave_sum(a1)
    o += [pk('add', y + 2*d, y + 2*d, a1, None, 'op_sel_hi:[1,0] neg_lo:[0,1] neg_hi:[0,1]') for d in range(4)]
    o += [pk('mul', T, y, y)] + [pk('fma', T, y + 2*d, y + 2*d, T) for d in (1, 2, 3)] + [I(f'v_add_f32 v{a2}, v{T}, v{T+1}'),
          I(f's_add_u32 s{sTOK}, s{sTOK}, {STAT_OFF}'), I(f'v_lshlrev_b32 v{R.u0}, 24, v{R.L}')] + wave_sum(a2)
    o += bf16r(T, a1) + bf16r(t, a2) + [I(f'v_add_f32 v{t}, 0x3727c5ac, v{t}')] + bf16r(t, t) + [I(f'v_sqrt_f32 v{t}, v{t}')] + bf16r(t, t)
    o += [I(f'v_rcp_f32 v{T+1}, v{t}'), I(f'v_mul_f32 v{T+3}, v{t}, v{t}'), I(f'v_mul_f32 v{T+2}, {LOG2E | 0x80000000:#x}, v{T+1}')]
    o += [I(f'buffer_store_dwordx4 {v(T,4)}, v{R.u0}, s[{sWS}:{sWS+3}], s{sTOK} offen{SC}', 'rst')]
    return o

def w2_dma(R, th, t, h):
    pre = []; n = SPLIT[th]
    if t == n and h == 0: pre = [I(f's_lshl_b32 s{sW2o}, s{sDl}, s{sSH}'), I(f'v_add_u32 v{R.W2d}, s{sW2o}, v{R.W2d}')]
    if t == 0 and h == 0:
        d = sWo if th else sWd
        pre = [I(f's_cmp_eq_u32 s{sSH}, 9'), I(f's_cselect_b64 s[{d}:{d+1}], s[{sWS}:{sWS+1}], s[{d}:{d+1}]'), I(f's_cselect_b32 s{d+2}, s{sWS+2}, s{d+2}')]
    g = dma(R.W2d, sWo if th else sWd, sW2o, sLX, SLOT[th][t % n] + 8192 * h, f'U{t}')
    return pre + [g[0], I(f's_lshl_b32 s{sW2o}, {8 * (t % n >> 1) + 4 * h + (t & 1)}, s{sSH}'), g[1]]

def interval_dmas(R, typ, th, i):
    g = []
    for e in (1, 0):
        S2 = i + 4 - e
        if S2 % 2 == 0 and 1 <= S2 // 2 < 8:
            S = S2 // 2
            g.append(dma(R.Xd, sX, sXo1 if e else sXo0, sLX, XBASE + (S % 3) * XSLOT + 2048 + e * 8192, f'X{S}', KP[S] * 128))
            if e == 1 and typ == 'A' and th == 1: g.append(halo_dma(R, S))
    sg = i + 4
    if sg < 16:
        base = WBASE + (sg % 5) * WSLOT; t = f'W{sg}'
        row = KP[sg // 2] * 64 + (sg & 1) * 32
        ua, ug = I(f's_mov_b32 s{sKa}, {row*3072}'), I(f's_mov_b32 s{sKg}, {row*3584}')
        a = dma(R.Va, sA, sKa if typ == 'A' else sKg, sLW, base + th * 8192, t)
        b = dma(R.Vb, sB, sKa if (typ == 'A' and th == 0) else sKg, sLW, base + th * 8192 + 4096, t)
        g += [[a[0], ua if typ == 'A' else ug, a[1]], [b[0], ug, b[1]] if (typ == 'A' and th == 1) else b]
        if th == 1: g.append(dma(R.Vb if typ == 'A' else R.Vc, sCc, sKg, sLW, base + 16384, t))
    if i >= 12:
        k0 = sum(NU[th][x] for x in range(12, i))
        g += [w2_dma(R, th, u // 2, u & 1) for u in range(k0, k0 + NU[th][i])]
    return g

ORDER = {'A': [1, 2, 0, 3, 4], 'B': [0, 2, 1, 3, 4]}
def reads(R, typ, th, st):
    xo = XBASE + ((st // 2) % 3) * XSLOT + th * 8192
    xr = R.Xr1 if st & 1 else R.Xr0
    slot = st % 5; wf = R.wf[st & 1]
    wr, mr, wo = (R.Wa, R.Ma, slot * WSLOT) if slot < 3 else (R.Wb, R.Mb, (slot - 3) * WSLOT)
    def w(p):
        if typ == 'B' and p == 4:
            return [I(f'ds_read_b64_tr_b16 {v(wf[p] + 2*h, 2)}, v{mr} offset:{wo + 16384 + 256*h}') for h in range(2)]
        return [I(f'ds_read_b64_tr_b16 {v(wf[p] + 2*h, 2)}, v{wr} offset:{wo + 4096*p + 512*h}') for h in range(2)]
    def x(i): return [I(f'ds_read_b128 {v(R.xf[i], 4)}, v{xr} offset:{xo + (i+1)*2048}')]
    o = w(ORDER[typ][0]) + x(3) + x(2) + x(1) + x(0) + (x(-1) if R.halo else [])
    for p in ORDER[typ][1:]: o += w(p)
    return o

def mfma16(d, a, b, c):
    return I(f'v_mfma_f32_16x16x32_bf16 {v(d,4)}, {v(a,4)}, {v(b,4)}, ' + (v(c,4) if c is not None else '0'))
def mfmas(R, typ, th, st):
    o = []; wf = R.wf[st & 1]
    for n, p in enumerate(ORDER[typ]):
        tiles = [3, 2, 1, 0] + ([-1] if (R.halo and p in (1, 2)) else [])
        if n & 1: tiles = tiles[::-1]
        if st & 1 and p in R.csp:
            o.append(I(f'v_smfmac_f32_16x16x64_bf16 {v(R.cs[p],4)}, {v(R.ones,4)}, {v(R.wf[0][p],8)}, v{R.idx}'))
        for i in tiles:
            d = R.acc[p][i]; c = d if st else None
            if typ == 'A' and p == 2: o.append(mfma16(d, R.xf[i], wf[p], c))
            else: o.append(mfma16(d, wf[p], R.xf[i], c))
    return o

def pk(op, d, a, b, c=None, mod=''):
    return I(f'v_pk_{op}_f32 {v(d,2)}, {v(a,2)}, {v(b,2)}' + (f', {v(c,2)}' if c is not None else '') + (' ' + mod if mod else ''))
def corr(a, cs, st):
    return [pk('fma', a + r, st, cs + r, a + r, 'op_sel_hi:[0,1,1] neg_lo:[1,0,0] neg_hi:[1,0,0]') for r in (0, 2)]
def ffn_tail(g, u, st, T, out):
    o = [pk('mul', T + r, g + r, st + 2, None, 'op_sel_hi:[1,0]') for r in (0, 2)]
    o += [I(f'v_exp_f32 v{T+r}, v{T+r}') for r in range(4)]
    o += [pk('mul', g + r, g + r, u + r) for r in (0, 2)]
    o += [pk('fma', T + r, st + 2, T + r, st + 2, 'op_sel:[1,0,1]') for r in (0, 2)]
    o += [I(f'v_rcp_f32 v{T+r}, v{T+r}') for r in range(4)]
    o += [pk('mul', g + r, g + r, T + r) for r in (0, 2)]
    o += [I(f'v_cvt_pk_bf16_f32 v{out}, v{g}, v{g+1}'), I(f'v_cvt_pk_bf16_f32 v{out+1}, v{g+2}, v{g+3}')]
    return o
def store_frag(R, q, soff, voff=None):
    return [I(f'v_permlane16_swap_b32 v{q}, v{q+2}'), I(f'v_permlane16_swap_b32 v{q+1}, v{q+3}')] + ([I(f's_mov_b32 exec_lo, {DIAG:#x}')] if DIAG else []) + [
            I(f'buffer_store_dwordx4 {v(q,4)}, v{R.L16 if voff is None else voff}, s[{sWS}:{sWS+3}], s{soff} offen{SC}', 'act')] + ([I('s_mov_b32 exec_lo, -1')] if DIAG else [])

def keep_scc(items):
    out = []
    for i in items:
        if i.mn.startswith(('s_cselect', 's_addc')): out[-1].append(i)
        else: out.append([i])
    return out
def weave(main, fill):
    out = []; k = 0
    for j, g in enumerate(main):
        while k < len(fill) and k * len(main) <= j * len(fill): out.append(fill[k]); k += 1
        out.append(g)
    return flat(out + fill[k:])

def place(m, groups):
    n = len(m); slots = [[] for _ in range(n + 1)]
    for items, a, b in groups:
        a = min(a, n - 1); b = max(min(b, n), a + 1)
        for k, it in enumerate(items):
            slots[1 + a + k * (b - a) // len(items)].extend(it if isinstance(it, list) else [it])
    o = list(slots[0])
    for k in range(n): o += [m[k]] + slots[k + 1]
    return o
def memphase(rd, dm, lead=0):
    rd = list(rd); o = rd[:lead]; rd = rd[lead:]; n0 = len(rd)
    for k, g in enumerate(dm):
        upto = n0 * k // len(dm)
        while n0 - len(rd) < upto: o.append(rd.pop(0))
        if len(g) == 2 and 'm0' in g[0].text and rd and rd[0].kind == 'ds': o += [g[0], rd.pop(0), g[1]]
        else: o += g
    return o + rd

WIN = [(12, 0), (212, _W1), (196, PAIR[6])]
_q = [list(range(216, 256, 4)) + [200, 204, 208] + list(range(192, 84, -4)), list(range(184, 208, 4)) + list(range(216, 256, 4)) + list(range(104, 168, 4))]
WREG = [[q[4 * u: 4 * u + 4] for u in range(len(q) // 4)] for q in _q]
def wread(th, t):
    a = SLOT[th][t % SPLIT[th]]; r, base = max((x for x in WIN if x[1] <= a), key=lambda x: x[1])
    return [I(f'ds_read_b64_tr_b16 {v(WREG[th][t >> 1][p] + 2*(t & 1), 2)}, v{r + p} offset:{a - base}') for p in range(4)]
def wdone(th, t): return waitreg(WREG[th][t >> 1][3] + 2 * (t & 1), 2)
def poll_issue(th, p): return [I(f's_buffer_load_dwordx{2 + 2*th} s[{sPoll}:{sPoll + 1 + 2*th}], s[{sWS}:{sWS+3}], s{sFo} offset:{p*128} glc')]

def stream(R0, typ, th):
    R = copy.copy(R0); A = Alloc(38, 154)
    R.halo = typ == 'A' and th == 0
    NE, SK, THR = NES[typ], SKS[typ], THRS[typ]
    R.csp = [] if th else [0, 3, 4] if (typ == 'A' and HONES) else [0, 1, 2, 3, 4]
    R.acc = [{i: A(4) for i in ([-1] if (typ == 'A' and p in (1, 2)) else []) + [0, 1, 2, 3]} for p in range(5)]
    R.cs = [A(4) for p in range(5)]
    T = A(4)
    R.xf = {i: 154 + 4 * (i + 1) for i in range(-1, 4)}
    w8 = [216 + 8 * p for p in range(5)]
    R.wf = [w8, [x + 4 for x in w8]] if th == 0 else [w8, w8]
    wr, ex, s16, sg, t0, t1, t2 = R.wr, R.ex, R.s16, R.sg, R.t0, R.t1, R.t2
    stq = {0: A(4), 1: 18, 2: 22, 3: 180, -1: 176}
    dq = [(x, g) for x in range(-3, 17) for g in interval_dmas(R, typ, th, x)]
    def D(i):
        k = 0; q = QUOTA[th]
        while k < len(dq) and dq[k][0] <= max(i, 0) and (k < q[min(i + 1, len(q) - 1)] or dq[k][0] <= i - 2 or i >= 16): k += 1
        g = [x[1] for x in dq[:k]]; del dq[:k]
        return g
    o = [I(f'L_{typ}{th}:')] + first_loads(R, typ, th) + [I(f's_setprio {LPRIO[th]}')]
    d0 = D(-1)
    if PI[0] == -1 and pf_mine(typ, th, 0): d0.insert(min(PFPOS + th, len(d0)), pf_load(R, typ, th, 0))
    sA_, (sB_, sC_), sS = setup_a(R, typ, th), setup_b(R, typ, th), row_stats(R)
    later = {}
    cpl = [I(f'buffer_load_dwordx4 {v(R.cv,4)}, v{R.c1}, s[{sWo}:{sWo+3}], 0 offen offset:{CPY % 8 * 128}')]
    if th == 1 and CPY < 8 and CPI[0] == -1:
        k = max(n for n, x in enumerate(sB_) if ('v', R.c2) in x.dst) + 1
        sB_ = sB_[:k] + cpl + sB_[k:]
    sC_ = keep_scc(sC_); npc = len(SBI[th])
    for k, x in enumerate(SBI[th]):
        piece = flat(sC_[k * len(sC_) // npc:(k + 1) * len(sC_) // npc])
        if x < 0: sB_ = sB_ + piece
        else: later[x] = later.get(x, []) + piece
    code = keep_scc(sA_[R.na:])
    walk = [I('s_mov_b64 exec, 0'), I(f's_branch L_P{th}w{typ}'), I(f'L_{typ}{th}r:'), I('s_mov_b64 exec, -1')]
    if NAP[0] < 99: later[NAP[0]] = later.get(NAP[0], []) + [I(f's_sleep {NAP[1]}')]
    if 0 <= WARM[th] < 99: later[WARM[th]] = later.get(WARM[th], []) + walk
    code += keep_scc(sB_ + stamp('setup')) + ([walk] if WARM[th] == -1 else []) + keep_scc(sS)
    k0, k1 = int(len(code) * W0[th] / 100), int(len(code) * W1[th] / 100)
    o += sA_[:R.na] + flat(code[:k0]) + weave(code[k0:k1], d0) + flat(code[k1:]) + stamp('late')
    for i in range(17):
        o += [waitlgkm0() if i else I('s_waitcnt lgkmcnt(0)'), waitvm(f'W{i}', f'X{i//2}', *(['rst'] if i == AT0 else ['stat'] if i == 16 else [])), I('s_barrier')] + stamp(f's{i}')
        dm = D(i)
        dm += [pf_load(R, typ, th, k) for k in range(4) if PI[k] == i and pf_mine(typ, th, k)]
        if th == 1:
            if CPY < 8 and i == CPI[0]: dm.append(cpl)
            if CPY < 8 and i == CPI[1]: dm.append([I(f'buffer_store_dwordx4 {v(R.cv,4)}, v{R.c2}, s[{sWS}:{sWS+3}], 0 offen{SC}', 'rst')])
            if AT0 <= i < AT0 + ATN:
                dm.append([I(f's_and_b32 s3, s{sC}, {ATN - 1}'), I(f's_cmp_eq_u32 s3, {i - AT0}'), I(f's_cbranch_scc0 L_{typ}a{i}'),
                           I(f'RAW buffer_atomic_add v{R.one}, v{R.at}, s[{sDbg}:{sDbg+3}], 0 offen{SC}'), I(f'L_{typ}a{i}:')])
            ld = f'buffer_load_dword v{R.p1}, v{R.L16}, s[{sDbg}:{sDbg+3}], s{sLW} offen{SC}'
            if i == CHK: dm.insert(0, [I(ld, 'chk')])
            if i == CHK + 1:
                chk = [f'v_cmp_gt_u32 vcc, 16, v{R.p1}', 's_nop 0', f's_and_b32 s{sa}, vcc_lo, s{sb}']
                g = [I(f's_cmp_eq_u32 s{sC}, 0'), I(f's_cselect_b32 s{sb}, 0xffff, 0'), waitvm('chk')] + [I(x) for x in chk]
                g += [I(f's_cbranch_scc0 L_{typ}ck'), I(f'RAW s_mov_b32 s{sc_}, {SPIN}'), I(f'L_{typ}cl:')]
                g += [I('RAW ' + x) for x in ['s_sleep 8', ld, f's_sub_u32 s{sc_}, s{sc_}, 1', 's_waitcnt vmcnt(0)', f's_cbranch_scc1 L_{typ}ck'] + chk + [f's_cbranch_scc1 L_{typ}cl']]
                later[i] = g + [I(f'L_{typ}ck:')]
            if i == STI:
                st_ = [[I(f's_add_u32 m0, s{sSD}, {ST4}'), I(f's_lshr_b32 s{sSD}, s{sSD}, 2'), I(f'buffer_load_dwordx4 v{R.Sv}, s[{sWS}:{sWS+3}], 0 offen{SC} lds', 'stat')]]
                if typ == 'A':
                    st_ += [[I(f's_add_u32 m0, s{sSD}, {SMO}'), I(f'buffer_load_dword v{R.Sv}, s[{sWS}:{sWS+3}], 0 offen{SC} lds', 'stat')],
                            [I(f's_add_u32 m0, s{sSD}, {SRO - 4}'), I(f'buffer_load_dword v{R.Sv}, s[{sWS}:{sWS+3}], 0 offen offset:4{SC} lds', 'stat')]]
                dm = st_ + dm
        if i < 16: rd = reads(R, typ, th, i)
        else:
            csr = []; rd = []
            for p in ORDER[typ]:
                if typ == 'A' and p == 2: csr.append(I(f'ds_read_b32 v{R.cs[p]}, v{t2} offset:{CSO + p*256}'))
                else: csr.append(I(f'ds_read_b128 {v(R.cs[p],4)}, v{t0} offset:{CSO + p*256}'))
            for k in range(3, -2 if R.halo else -1, -1) if typ == 'A' else range(4):
                rd.append(I(f'ds_read_b128 {v(stq[k],4)}, v{s16} offset:{ST4 + (th*64 + (k+1)*16)*16}'))
            rd += flat([waitvm(f'U{t}')] + wread(th, t) for t in range(NRD[th]))
        if th == 0:
            m = mfmas(R, typ, th, i) if i < 16 else []
            if i == 15:
                sm = [x for x in m if x.mn.startswith('v_smfmac')]; m = [x for x in m if not x.mn.startswith('v_smfmac')]
                m = m[:8] + sm + m[8:]
                m = place(m, [([I(f'v_add_f32 v{R.cs[p]}, v{R.cs[p]}, v{R.cs[p]+1}') for p in R.csp], len(m) - 4, len(m) - 1)])
            if i == 16:
                if typ == 'A' and HONES:
                    o += [I('s_mov_b32 exec_lo, 0x10001'), I('s_mov_b32 exec_hi, 0x10001'), I(f'ds_write_b128 v{t0}, {v(R.acc[1][-1],4)} offset:{CSO + 256}'),
                          I('s_mov_b64 exec, 0xffff'), I(f'ds_write_b32 v{t2}, v{R.acc[2][-1]} offset:{CSO + 512}'), I('s_mov_b64 exec, -1')]
                o += [I(f'ds_write_b32 v{t2}, v{R.cs[p]} offset:{CSO + p*256}') for p in R.csp]
                rd = csr + rd
                held = dm[D16:]; dm = dm[:D16]
            if i == 0 and I0 & 1: o += rd + place(m, [(dm, 6, len(m))]) + later.get(i, [])
            else: o += (rd + flat(dm) if i == 0 else memphase(rd, dm, 2)) + m + later.get(i, [])
            if i == 16 and typ == 'B': o += [waitreg(R.cs[4], 4), I('s_barrier')]
        else:
            o += mfmas(R, typ, th, i - 1) if i else []
            if i == 16 and typ == 'B': o += [I('s_barrier')]; rd = rd + csr
            o += (flat(dm) + rd if (i == 0 and I0 & 2) else memphase(rd, dm)) + later.get(i, [])
    o += [I(f's_setprio {EPRIO[th]}')] + stamp('loop')
    Q = [164, 168]; b = []
    def ffn_pair(pg, pu, so):
        g = []
        for hf in range(2):
            for i in (2*hf, 2*hf+1):
                g += corr(R.acc[pg][i], R.cs[pg], stq[i]) + corr(R.acc[pu][i], R.cs[pu], stq[i])
                g += ffn_tail(R.acc[pg][i], R.acc[pu][i], stq[i], T, R.acc[pu][2*hf] + 2*(i & 1))
            g += store_frag(R, R.acc[pu][2*hf], so + hf)
        return g
    if typ == 'B':
        stm = [172, 176]
        for i in range(2): b.append(I(f'ds_read_b128 {v(stm[i],4)}, v{t1} offset:{ST4 + (th*64 + (i+1)*16)*16}'))
        b += ffn_pair(0, 2, sST) + ffn_pair(1, 3, sST + 2)
        for i in range(4): b += corr(R.acc[4][i], R.cs[4], stq[i])
        for i in range(2):
            for r in range(4): b.append(I(f'v_permlane32_swap_b32 v{R.acc[4][i]+r}, v{R.acc[4][i+2]+r}'))
        for i in range(2): b += ffn_tail(R.acc[4][i], R.acc[4][i+2], stm[i], T, Q[0] + 2*i)
        b += store_frag(R, Q[0], sST + 4, ex)
    else:
        vm, vr, vb = [172, Q[0]], [26, Q[1]], 154
        def vrd(i):
            off = (th*64 + (i+1)*16) * 4
            return [I(f'ds_read_b128 {v(vr[i&1],4)}, v{sg} offset:{SRO + off}'), I(f'ds_read_b128 {v(vm[i&1],4)}, v{sg} offset:{SMO + off}')]
        seq = [3, 2, 1, 0, -1] if th == 0 else [3, 2, 1, 0]
        b += vrd(seq[0])
        for n, i in enumerate(seq):
            a = R.acc[2][i]; k = R.acc[1][i]
            if n + 1 < len(seq): b += vrd(seq[n + 1])
            b += corr(k, R.cs[1], stq[i]) + [pk('mul', k + r, stq[i], k + r, None, 'op_sel:[1,0]') for r in (0, 2)]
            b += [I(f'v_cvt_pk_bf16_f32 v{k+j}, v{k+2*j}, v{k+2*j+1}') for j in range(2)]
            b += [pk('fma', a + r, vm[i&1] + r, R.cs[2], a + r, 'op_sel_hi:[1,0,1] neg_lo:[1,0,0] neg_hi:[1,0,0]') for r in (0, 2)]
            b += [pk('mul', a + r, a + r, vr[i&1] + r) for r in (0, 2)]
            b += [I(f'v_cvt_pk_bf16_f32 v{vb+2*(i+1)+j}, v{a+2*j}, v{a+2*j+1}') for j in range(2)]
            if n == 0 and th == 0:
                b += [I(f'ds_write_b64 v{ex}, {v(k,2)} offset:{XBASE + 32*1024}'), I(f'ds_write_b64 v{ex}, {v(vb + 8, 2)} offset:{XBASE + 34*1024}')]
            if i >= 0:
                q = R.acc[0][i]
                b += corr(q, R.cs[0], stq[i]) + [I(f'v_cvt_pk_bf16_f32 v{k+2+j}, v{q+2*j}, v{q+2*j+1}') for j in range(2)]
            if n == BN and th == 0: b += [waitlgkm0(), I('s_barrier')]
        negc = R.acc[2][-1]
        def m16(d, a, b_, c): return I(f'v_mfma_f32_16x16x16_bf16 {v(d,4)}, {v(a,2)}, {v(b_,2)}, ' + (v(c,4) if c is not None else '0'))
        mP, mC0, mC1, t = [vm[0] + j for j in range(4)]; M = vr[0]
        msk = [I(f'v_bfe_i32 v{mP}, v{R.L}, 0, 1'),
               I(f'v_and_b32 v{t}, 14, v{R.L}'), I(f'v_lshrrev_b32 v{t0}, 2, v{sg}'), I(f'v_sub_u32 v{t}, v{t}, v{t0}'),
               I(f'v_not_b32 v{mC0}, v{t}'), I(f'v_ashrrev_i32 v{mC0}, 31, v{mC0}'),
               I(f'v_sub_u32 v{mC1}, 1, v{t}'), I(f'v_ashrrev_i32 v{mC1}, 31, v{mC1}'),
               I(f'v_xor_b32 v{t}, 0xffff, v{mP}'),
               I(f'v_and_b32 v{M+2}, v{t}, v{mC0}'), I(f'v_and_b32 v{M+3}, v{t}, v{mC1}'),
               I(f'v_xor_b32 v{M}, v{t}, v{M+2}'), I(f'v_xor_b32 v{M+1}, v{t}, v{M+3}')]
        if th == 0:
            msk = [[I(f's_cmp_eq_u32 s{sRB}, 0'), I(f's_cselect_b32 s{sa}, 0xf149f2ca, 0')]] + [I(f'v_mov_b32 v{negc+r}, s{sa}') for r in range(4)] + msk
        sm = []; k = R.acc[1]
        for i in (3, 2, 1, 0):
            sm += [m16(R.acc[0][i], k[i], k[i] + 2, None), m16(R.acc[2][i], k[i-1], k[i] + 2, negc if (i == 0 and th == 0) else None)]
        b += place(sm, [(msk, 0, 8)])
        sel = lambda d, m, a, b_: I(f'v_bitop3_b32 v{d}, v{m}, v{a}, v{b_} bitop3:0xca')
        c = R.acc[0]
        for i in (3, 2, 1, 0):
            p = R.acc[2][i]
            b += [sel(c[i], mP, c[i]+1, c[i]), sel(c[i]+1, mP, c[i]+3, c[i]+2), sel(p, mP, p+1, p), sel(p+1, mP, p+3, p+2),
                  sel(c[i], mC0, c[i], p), sel(c[i]+1, mC1, c[i]+1, p+1), I(f'v_max_f32 v{c[i]+2}, v{c[i]}, v{c[i]+1}')]
        x = [c[i] + 2 for i in range(4)]
        ke = [I(f'v_mul_f32 v{c[i]+3}, 0xbe800000, v{stq[i]+2}') for i in range(4)]
        b += [I(f'v_permlane16_swap_b32 v{x[2]}, v{x[3]}'), ke[0], I(f'v_permlane16_swap_b32 v{x[0]}, v{x[1]}'), I(f'v_max_f32 v{x[2]}, v{x[2]}, v{x[3]}'),
              I(f'v_max_f32 v{x[0]}, v{x[0]}, v{x[1]}'), ke[1], ke[2], I(f'v_permlane32_swap_b32 v{x[0]}, v{x[2]}'), I(f'v_max_f32 v{x[0]}, v{x[0]}, v{x[2]}'),
              I(f'v_mov_b32 v{x[2]}, v{x[0]}'), ke[3], I(f'v_permlane32_swap_b32 v{x[0]}, v{x[2]}'), I(f'v_mov_b32 v{x[1]}, v{x[0]}'), I(f'v_mov_b32 v{x[3]}, v{x[2]}'),
              I(f'v_permlane16_swap_b32 v{x[0]}, v{x[1]}'), I(f'v_permlane16_swap_b32 v{x[2]}, v{x[3]}')]
        for i in range(4):
            b += [pk('add', c[i], c[i], c[i] + 2, None, 'op_sel_hi:[1,0] neg_lo:[0,1] neg_hi:[0,1]'),
                  pk('mul', c[i], c[i] + 2, c[i], None, 'op_sel:[1,0]'), I(f'v_exp_f32 v{c[i]}, v{c[i]}'), I(f'v_exp_f32 v{c[i]+1}, v{c[i]+1}')]
        pv = []
        for i in range(4):
            p = R.acc[1][i]
            g = [I(f'v_cvt_pk_bf16_f32 v{c[i]}, v{c[i]}, v{c[i]}'), I(f'v_cvt_pk_bf16_f32 v{c[i]+1}, v{c[i]+1}, v{c[i]+1}'),
                 I(f'v_and_b32 v{p}, v{c[i]}, v{M}'), I(f'v_and_b32 v{p+1}, v{c[i]+1}, v{M+1}'), I(f'v_and_b32 v{p+2}, v{c[i]}, v{M+2}'), I(f'v_and_b32 v{p+3}, v{c[i]+1}, v{M+3}')]
            b += g[:2] + pv[:1] + g[2:4] + pv[1:] + g[4:]
            pv = [mfma16(R.acc[2][i], R.ones, p, None), mfma16(c[i], vb + 2*i, p, None)]
        b += pv + ffn_pair(3, 4, sST)
        for i in range(4): b.append(I(f'v_rcp_f32 v{R.acc[2][i]}, v{R.acc[2][i]}'))
        for hf in range(2):
            for i in (2*hf, 2*hf+1):
                b += [pk('mul', c[i] + r, c[i] + r, R.acc[2][i], None, 'op_sel_hi:[1,0]') for r in (0, 2)]
                b += [I(f'v_cvt_pk_bf16_f32 v{Q[hf]+2*(i&1)+j}, v{c[i]+2*j}, v{c[i]+2*j+1}') for j in range(2)]
            b += store_frag(R, Q[hf], sST + 2 + hf)
    if CUT & 1 and typ == 'A': b = [i for i in b if not (i.mn == 'v_bitop3_b32' or 'op_sel:[1,0]' in i.text)]
    if CUT & 2: b = [i for i in b if 'neg_lo:[1,0,0]' not in i.text]
    if th == 0 and held:
        b = keep_scc(b); k = len(b) // 8
        b = flat(b[:k]) + weave(b[k:4*k], held) + flat(b[4*k:])
    H = SPLIT[th]; assert NRD[0] == 0 and NE[0] == 0
    stage = [[waitvm(f'U{t}')] + wread(th, t) for t in range(NRD[th], 2)]
    for t in range(H):
        if t + 2 in range(max(NRD[th], 2), H): stage.append([waitvm(f'U{t+2}')] + wread(th, t + 2))
        thr = [I(f's_waitcnt vmcnt({THR - 1})')] if THR else []
        if t < NE[th]: stage += [[wdone(th, t)] + thr + w2_dma(R, th, t + H, 0), thr + w2_dma(R, th, t + H, 1)]
    halo = [I('s_barrier'), I(f'ds_read_b64 {v(R.acc[1][-1],2)}, v{ex} offset:{XBASE + 32*1024}'), I(f'ds_read_b64 {v(154,2)}, v{ex} offset:{XBASE + 34*1024}')] + csr if (typ == 'A' and th) else []
    if NE[th]: o += flat(stage[:BS]) + halo + flat(stage[BS:]) + stamp('u8a') + b + stamp('epi')
    else: o += halo + stamp('u8a') + b + stamp('epi') + flat(stage)
    npre = min(NES['A'][th], NES['B'][th])
    if th: o += [waitlgkm0()] + ([waitvm(f'U{H - 1 + npre}')] + flat(wread(th, t) for t in range(H, H + npre)) if npre else [])
    rest = [[I(f'buffer_load_dwordx2 {v(20 + 2*q, 2)}, v{R.a4 if q else R.xo}, s[{sX}:{sX+3}], 0 offen')] for q in range(2)]
    rest += [[wdone(th, t - H)] + w2_dma(R, th, t, h) for t in range(H + NE[th], 2 * H) for h in range(2)]; sk = min(2 * SK[th] + 2, len(rest))
    signal = [waitvm('act'), I('s_mov_b64 exec, 1'), I(f'ds_add_rtn_u32 v{t0}, v{R.L}, v{R.one} offset:{CNT + 4*th}'), waitlgkm0(),
              I(f'v_readfirstlane_b32 s{sa}, v{t0}'), I('s_mov_b64 exec, -1'), I(f's_xor_b32 s{sa}, s{sa}, 3'), I(f's_lshl_b32 s{sa}, s{sa}, 24'), I(f'v_add_u32 v{t0}, s{sa}, v{R.fs}'),
              I(f'buffer_store_dword v{R.one}, v{t0}, s[{sWS}:{sWS+3}], 0 offen{SC}'), I(f's_setprio {P2PRIO[th]}')] + stamp('flag')
    if THR0: rest = rest[:sk] + [[I(f's_waitcnt vmcnt({THR0 - 1})')] + g for g in rest[sk:]]
    o += flat(rest[:sk])
    if rest[sk:]: o += signal + flat(rest[sk:-4]) + poll_issue(th, 0) + flat(rest[max(sk, len(rest) - 4):])
    else: o += poll_issue(th, 0) + signal
    return o + [I(f's_branch L_P{th}')]

def phase2(R, th):
    L, L16, t0, t1, t2, xo, av, one = R.L, R.L16, R.t0, R.t1, R.t2, R.xo, R.av, R.one
    ra, zr, xv, wa, xo1, ra1, av2 = 18, 19, 20, [17, t1], R.a4, R.ex, R.W2d
    acc = [[24 + 16 * tt + 4 * p for p in range(4)] for tt in range(2)]
    NA, LA1 = NAS[th], LAS[th]
    af = [56 + 4 * k for k in range(NA)]; assert NA <= (8 if th == 0 else 12) and NA % 2 == 0
    H = SPLIT[th]; NT = 2 * H; P = f'L_P{th}'; W = WREG[th]
    chk = [f's_and_b32 s{sPoll}, s{sPoll}, s{sPoll+k}' for k in range(1, 2 + 2 * th)]
    def poll_check(p):
        return [waitlgkm0()] + [I(x) for x in chk] + [I(f's_cbranch_scc1 {P}g{p}'), I(f'RAW s_mov_b32 s{sc_}, {SPIN}'), I(f'{P}p{p}:')] + [I('RAW ' + x) for x in
                [f's_sleep {SLEEP}', poll_issue(th, p)[0].text, f's_sub_u32 s{sc_}, s{sc_}, 1', 's_waitcnt lgkmcnt(0)', f's_cbranch_scc1 {P}g{p}'] + chk +
                [f's_cbranch_scc0 {P}p{p}']] + [I(f'{P}g{p}:')] + stamp(f'go{p}')
    def frag(t):
        return ((t >> 2) * 2 + (t & 1), t >> 1 & 1) if CHAIN else (t >> 1, t & 1)
    cur = [None]
    def aload(n):
        p, t = divmod(n, NT); g = []
        if t == 0 and p == 1: g += poll_check(1)
        u, tt = frag(t); second = u >= H // 2; u %= H // 2
        so = p * 2 * 144 * 1024 + (u >> 1) * 4096; off = (u & 1) * 2048 + tt * 256
        if so != cur[0]: g += [I(f's_mov_b32 s{sAr}, {so}')]; cur[0] = so
        return g + [I(f'buffer_load_dwordx4 {v(af[n % NA],4)}, v{av2 if second else av}, s[{sWS}:{sWS+3}], s{sAr} offen' + (f' offset:{off}' if off else '') + SC)]
    nxt = [NA]
    def more(n):
        g = poll_issue(th, 1) if n == NT - LA1 - 4 else []
        lim = min(n + 2 + NA, 2 * NT) if n + 2 >= NT - LA1 else min(n + 2 + NA, NT)
        while nxt[0] < lim: g += aload(nxt[0]); nxt[0] += 1
        return g
    o = [I(f'{P}:')] + stamp('r2') + [I(f's_lshl_b32 s{sa}, s{sDl}, 8'), I(f'v_add_u32 v{av2}, s{sa}, v{av}'), I('s_waitcnt lgkmcnt(0)')] + poll_check(0) + flat(aload(n) for n in range(NA))
    o += [I(f's_add_u32 s{sd}, s{sLX}, {_W1}'), I(f'v_lshrrev_b32 v{t0}, 4, v{L}'), I(f'v_lshl_add_u32 v{t2}, v{t0}, 5, v{L16}'), I(f'v_and_b32 v{t2}, 0xf0, v{t2}'),
          I(f'v_lshl_add_u32 v{t2}, v{t0}, 8, v{t2}'), I(f'v_add_u32 v{wa[0]}, s{sd}, v{t2}'), I(f'v_xor_b32 v{wa[1]}, 128, v{wa[0]}'),
          I(f'v_and_b32 v{t0}, 7, v0'), I(f'v_lshrrev_b32 v{t2}, 4, v0'), I(f'v_lshl_add_u32 v{t0}, v{t0}, 1, v{t2}'), I(f'v_and_b32 v{t0}, 15, v{t0}'), I(f'v_lshlrev_b32 v{ra}, 4, v{t0}'),
          I(f'v_and_b32 v{t0}, 3, v0'), I(f'v_lshl_add_u32 v{ra}, v{t0}, 8, v{ra}'), I(f'v_bfe_u32 v{t2}, v0, 2, 2'), I(f'v_lshl_add_u32 v{ra}, v{t2}, 13, v{ra}'),
          I(f'v_add_u32 v{ra}, {_W1 + th * 32768}, v{ra}'),
          I(f's_lshl_b32 s{sa}, s{sC}, 8'), I(f'v_lshl_add_u32 v{ra1}, v{t2}, 13, s{sa}'), I(f'v_lshl_add_u32 v{ra1}, v{R.gp}, 6, v{ra1}'), I(f'v_lshl_add_u32 v{ra1}, v{t0}, 4, v{ra1}'),
          I(f'v_mov_b32 v{zr}, 0'), I(f's_mov_b32 s{sL2E}, {LOG2E | 0x80000000:#x}')]
    def slab_write(p, tt):
        if p == 1:
            return [I(f'ds_write_addtid_b32 v{acc[tt][q] + r} offset:{8192*(4*tt + q) + 4096*tt + 256*r}') for q in range(4) for r in range(4)]
        return [I(f'ds_write_b128 v{wa[q & 1]}, {v(acc[tt][q], 4)} offset:{8192*(4*tt + q)}') for q in range(4)]
    Pq = W[0] + W[1]; X = 12
    def fin_read(p):
        return [I(f'ds_read_b128 {v(Pq[k], 4)}, v{ra1 if p else ra} offset:{(XBASE + th * 36864 if p else 0) + k*1024}') for k in (0, 1, 2, 3, 6, 7, 4, 5)]
    def fin_x(p):
        return flat([I(f'v_lshlrev_b32 v{X+2*d}, 16, v{xv+2*p+d}'), I(f'v_and_b32 v{X+2*d+1}, 0xffff0000, v{xv+2*p+d}')] for d in range(2))
    def fin_math(p):
        f = Pq[0]; T = Pq[1]; pr = (0, 2); g = []
        for a, b in ((0, 1), (2, 3), (6, 7), (0, 2), (0, 6)): g += [pk('add', Pq[a] + r, Pq[a] + r, Pq[b] + r) for r in pr]
        g += [I(f'v_pk_mul_f32 {v(T+r,2)}, {v(f+r,2)}, s[{sL2E}:{sL2E+1}] op_sel_hi:[1,0]') for r in pr]
        g += [I(f'v_exp_f32 v{T+r}, v{T+r}') for r in range(4)]
        g += [pk('add', Pq[4] + r, Pq[4] + r, Pq[5] + r) for r in pr]
        g += [I(f'v_pk_add_f32 {v(T+r,2)}, {v(T+r,2)}, 1.0 op_sel_hi:[1,0]') for r in pr]
        g += [I(f'v_rcp_f32 v{T+r}, v{T+r}') for r in range(4)]
        g += [pk('mul', f + r, f + r, Pq[4] + r) for r in pr]
        g += [pk('fma', X + r, f + r, T + r, X + r) for r in pr]
        g += [I(f'v_cvt_pk_bf16_f32 v{xv + 2*p + r//2}, v{X+r}, v{X+r+1}') for r in pr]
        return g + [I(f'buffer_store_dwordx2 {v(xv + 2*p, 2)}, v{xo1 if p else xo}, s[{sOut}:{sOut+3}], 0 offen' + OUTSC[p])]
    def unpack(g):
        out = []
        for i in g:
            if not i.mn.startswith('v_pk_'): out.append(i); continue
            op = i.mn[5:8]
            for h in range(2):
                ops = [f'v{min(regs(x))[1] + h}' if x.startswith('v') else (f's{min(regs(x))[1]}' if x.startswith('s') else x) for x in i.ops[:4 if op == 'fma' else 3]]
                if op != 'fma': ops = [ops[0], ops[2], ops[1]]
                out.append(I(f'v_{op}_f32 ' + ', '.join(ops)))
        return out
    mid = fin_x(0) + unpack(fin_math(0)); km = (len(mid) + NM - 1) // NM
    late = list(range(H + min(NES['A'][th], NES['B'][th]), NT))
    for n in range(0, 2 * NT, 2):
        p, t = divmod(n, NT); i = t // 2
        o += stamp(f'k{n}')
        if th == 1 and n == PSW: o += [I('s_setprio 0')]
        m = []
        for q in range(4):
            for j, k in enumerate((1, 0) if (SNK and q & 1) else (0, 1)):
                u, tt = frag(t + k); ab = [W[u][q], af[(n + k) % NA]][::-1 if p else 1]
                fresh = (t < 4 and j == 0) if CHAIN else u == 0
                m.append(mfma16(acc[tt][q], ab[0], ab[1], None if fresh else acc[tt][q]))
        fill = []
        if p == 1 and i > RK[th]: fill = mid[:km]; del mid[:km]
        if CHAIN and t == NT - 2:
            if p: o += [I(f's_add_u32 m0, s{sLX}, {XBASE}')]
            o += place(m[:3], [(fill, 0, 3)] if fill else []) + place(m[3:], [(slab_write(p, 0), 0, 5)])
        else: o += place(m, [(fill, 0, 8)] if fill else [])
        o += more(n)
        if p == 0:
            for _ in range(3):
                if late: o += wread(th, late.pop(0))
        cr = f'ds_read_b32 v{t0}, v{zr} offset:{CNT + 8}'
        if p == 1 and i == RK[th] - 1: o += [I(cr)]
        if p == 1 and i == RK[th]:
            ck = [f'v_readfirstlane_b32 s{sa}, v{t0}', 's_nop 0', f's_cmp_ge_u32 s{sa}, 8']
            o += [I(x) for x in ck] + [I(f's_cbranch_scc1 {P}v'), I(f'{P}u:')] + [I('RAW ' + x) for x in ['s_sleep 1', cr, 's_waitcnt lgkmcnt(0)'] + ck + [f's_cbranch_scc0 {P}u']]
            o += [I(f'{P}v:')] + fin_read(0)
        if t == NT - 2:
            if p: o += stamp('mm')
            if not CHAIN: o += ([I(f's_add_u32 m0, s{sLX}, {XBASE}'), I('s_nop 0')] if p else []) + slab_write(p, 0)
            o += slab_write(p, 1)
            if p == 0: o += [I('s_mov_b64 exec, 1'), I(f'ds_add_u32 v{L}, v{one} offset:{CNT + 8}'), I('s_mov_b64 exec, -1')]
    assert not mid and not late and RK[th] >= 1
    o += fin_x(1) + [I('s_waitcnt lgkmcnt(0)'), I('s_barrier')] + stamp('fin') + fin_read(1) + fin_math(1)
    if STAMP and PROBE >= 0:
        o += [I('s_waitcnt vmcnt(0)')] + stamp('end') + [I('s_memrealtime s[4:5]'), I('s_waitcnt lgkmcnt(0)'), I(f's_cmp_eq_u32 s2, {PROBE}'), I(f's_cbranch_scc0 {P}z'),
              I('s_sub_u32 s6, s72, s70'), I('s_min_u32 s6, s6, 5000'), I('s_lshl_b32 s6, s6, 3'), I(f'{P}y:'), I('s_memrealtime s[8:9]'), I('s_waitcnt lgkmcnt(0)'),
              I('s_sub_u32 s7, s8, s4'), I('s_cmp_lt_u32 s7, s6'), I(f's_cbranch_scc1 {P}y'), I(f'{P}z:')]
    elif STAMP:
        o += [I('s_waitcnt vmcnt(0)')] + stamp('end') + [I('s_waitcnt lgkmcnt(0)'), I(f's_lshl3_add_u32 s{sa}, s2, s{sW}'), I(f's_lshl_b32 s{sa}, s{sa}, 7'),
              I(f's_add_u32 s{sa}, s{sa}, {STAMP_OFF:#x}'), I(f'v_mov_b32 v{t0}, s{sa}'), I(f's_sub_u32 s{sWS}, s{sWS}, {WSO << 20}'), I(f's_subb_u32 s{sWS+1}, s{sWS+1}, 0')]
        for k in range(16):
            o += [I(f'v_mov_b32 v{t1}, s{70+2*k}'), I(f'global_store_dword v{t0}, v{t1}, s[{sWS}:{sWS+1}] offset:{4*k}')]
    return o + [I('s_endpgm')]

def stubs(st, name):
    sz = iter(sizes([i.text for i in st if i.kind != 'label']))
    out = []; off = 0; nxt = 4096; k = 0; bars = 0
    for i in st:
        if i.kind != 'label':
            if off >= nxt:
                out += [I(f'{name}w{k}:'), I(f's_cbranch_execz {name}w{k+1}'), I('s_nop 0')]; k += 1; off += 8
                nxt = (off // 4096 + 1) * 4096
            if i.mn == 's_barrier': bars += 1
            if bars >= 17: nxt = min(nxt, (off // WSTR + 1) * WSTR)
            off += next(sz)
        out.append(i)
    assert off <= 12288
    for i in out:
        if i.text == f's_cbranch_execz {name}w{k}': i.text = f's_cbranch_execz {name}r'
    return out

DOC = """; One persistent kernel, 256 workgroups (one per CU) x 8 waves; written by gen/gen14.py (hand-written generator).
;   16x16x32 MFMAs; x and weight slabs stream through LDS rings (LDS-DMA, transposing reads).  LayerNorm is folded in
;   and publishes them; column sums come from sparse MFMAs with ones.  Type A blocks (4 heads + 64 FFN columns) finish
"""

def main():
    assert KP[0] == 0 and sorted(KP) == list(range(8))
    assert CHK + 1 < 12 and CPI[1] < AT0 and STI > CHK + 1 and min(PI[1:]) >= 0 and all(x < 11 or x == 99 for x in PI)
    R, o = common()
    txt = text(finalize(o))
    pre = [Ins(i.text, i.tag) for i in o if i.kind == 'vmem']
    for typ in 'AB':
        for th in range(2):
            st = align8(finalize(pre + stream(R, typ, th))[len(pre):])
            txt += f'; ---- phase 1, type {typ}, token half {th} ----\n.p2align 12\n' + text(stubs(st, f'L_{typ}{th}') if WARM[th] < 99 else st)
    for th in range(2):
        txt += f'; ---- phase 2, waves {4*th}-{4*th+3} ----\n.p2align 12\n' + (f'L_P{th}wA:\n  s_branch L_A{th}w0\nL_P{th}wB:\n  s_branch L_B{th}w0\n' if WARM[th] < 99 else '') + text(align8(finalize(phase2(R, th))))
    hdr = open('cdna_kernels/' + NAME + '.s.ref').read().split('; Override launch')[0]
    n = NAME + '_kernel'
    s_ = hdr + DOC + '; @launch grid=(256,1,1) block=(512,1,1) lds=163840\n.amdgcn_target "amdgcn-amd-amdhsa--gfx950"\n.text\n'
    s_ += f'.globl {n}\n.p2align 8\n.type {n},@function\n{n}:\n{txt}L_end:\n.fill (66048 - (L_end - {n})) / 4, 4, 0xbf800000\n'
    s_ += f'''.section .rodata,"a"
.p2align 6
.amdhsa_kernel {n}
  .amdhsa_next_free_vgpr 256
  .amdhsa_next_free_sgpr 102
  .amdhsa_accum_offset 256
  .amdhsa_group_segment_fixed_size 0
  .amdhsa_kernarg_size 80
  .amdhsa_user_sgpr_count 2
  .amdhsa_user_sgpr_kernarg_segment_ptr 1
  .amdhsa_system_sgpr_workgroup_id_x 1
  .amdhsa_float_denorm_mode_32 3
.end_amdhsa_kernel
'''
    open(opt('-o', 'cdna_kernels/' + NAME + '.s'), 'w').write(s_)
main()
```

```python
import sys, copy
from asmlib import *

def opt(name, default):
    return type(default)(sys.argv[sys.argv.index(name) + 1]) if name in sys.argv else default
def optl(name, default): return [int(x) for x in opt(name, default).split(',')]
STAMP = '--stamp' in sys.argv
NAME = 'recurrent_scan__sliding_local_dilated__swiglu_ffn__prompt'
LOG2E = 0x3fb8aa3b
ACT_BYTES = 64 * 144 * 1024
FLAG_OFF = ACT_BYTES
STAT_OFF = FLAG_OFF + 131072
CPY_OFF = STAT_OFF + 32768
WS_BYTES = CPY_OFF + 2304 * 128
STAMP_OFF = 16 << 20
QUOTA = [optl('--q0', '4,3,2,4,3,4,3,4,3,4,3,4,3,5,4'), optl('--q1', '6,4,5,4,5,4,6')]; LK = opt('--lk', 4); LEAD = optl('--lead', '2,2,0,0')
PI = optl('--pi', '-1,2,5,8')
PB = [1] + optl('--pb', '3,6') + [8]
EXB = opt('--exb', 0)
EXM = opt('--exm', 8)
ATN = opt('--atn', 2); STI = opt('--sti', 13)
AT0 = opt('--at0', 4)
CHK = opt('--chk', 10)
CPY = opt('--cpy', 3)
CPI = optl('--cpi', '0,2')
NRD = optl('--nrd', '0,3')
NES = {'A': optl('--nea', '0,8'), 'B': optl('--neb', '0,8')}
SKS = {'A': optl('--ska', '3,0'), 'B': optl('--skb', '3,0')}
NAS = optl('--na', '8,6'); LAS = optl('--la1', '6,6')
RK = optl('--rk', '4,2'); NM = opt('--nm', 4)
P2PRIO = optl('--pp', '0,1'); LPRIO = optl('--lp', '1,2'); EPRIO = optl('--ep', '3,2')
PFPOS = opt('--pfpos', 2); SBI = [optl('--sb0', '2'), optl('--sb1', '2')]; W0 = optl('--w0', '10,0'); W1 = optl('--w1', '100,100'); FINP = opt('--finp', 9)
THRS = {'A': opt('--thra', 8), 'B': opt('--thrb', 7)}
THR0 = opt('--thr0', 0); CHAIN = opt('--chain', 1); PSW = opt('--psw', 12); SNK = opt('--snk', 1)
DIAG = int(opt('--diag', '0'), 16)
ROTC = int(opt('--rotc', 'ff'), 16)
KP = optl('--kp', '0,1,2,3,4,5,6,7'); GX = opt('--gx', 2); TOKL = opt('--tokl', 1)
OUTSC = opt('--outsc', ',').replace('_', ' ').split(',')
BN = opt('--bn', 3); BS = opt('--bs', 6); D16 = opt('--d16', 4); NOR2 = optl('--nor2', '99,99')
WARM = optl('--warm', '-1,-1'); WSTR = opt('--wstr', 4096)
WSO = 0
NAP = optl('--nap', '99,0')
ROWL = opt('--rowl', 1)
I0 = opt('--i0', 3)
CUT = opt('--cut', 0)
SKD = opt('--skd', 3)
HONES = opt('--hones', 1)
SLEEP = opt('--sleep', 3); SPIN = 0x40000
PROBE = opt('--probe', -1)
SC = ' sc1'; OOB = 0x40000000
PTS = opt('--pts', 'entry,s0,s8,s16,epi,go0,mm,end').split(',')
def stamp(name):
    if name not in PTS or not STAMP: return []
    k = PTS.index(name)
    return [I(f's_memrealtime s[{70+2*k}:{71+2*k}]'), I(f's_memtime s[{86+2*k}:{87+2*k}]')]

XBASE, XSLOT = 6144, 18432
WBASE, WSLOT = 61440, 20480
ST4, SMO, SRO, CSO, CNT = 0, 3072, 3840, 4608, 5888
_W1 = WBASE + WSLOT
PAIR = [XBASE + 36*1024, _W1, _W1 + 2*8192, _W1 + 4*8192, XBASE, _W1 + 6*8192, _W1 + 8*8192, XBASE + 16*1024, XBASE + 52*1024]
def blk_iv(n): return 2 * (n // 10) + (n % 10 >= 4)
def free_from(a):
    f = [blk_iv(n) + 1 for n in range(55, 80) if a < WBASE + (n % 25 + 1) * 4096 and WBASE + n % 25 * 4096 < a + 8192]
    f += [2 * S + 1 for S in (5, 6, 7) if a < XBASE + (S % 3 + 1) * XSLOT and XBASE + S % 3 * XSLOT < a + 8192]
    return max(f + [CHK + 2])
_so = sorted(PAIR, key=lambda a: (free_from(a + 8192), free_from(a)))
SLOT = [[x for a in _so for x in ([a, a + 4096] if a == PAIR[6] else [a])], [a for a in _so if a != PAIR[6]]]
KRAW, VRAW = XBASE + 16*1024, XBASE + 52*1024

sPF2, sFo, sNW, sDl, sPF1 = 0, 65, 4, 5, 6
SPLIT = [10, 8]
sDbg, sWo, sWd, sOut, sX, sA, sB, sCc, sWS = 36, 8, 16, 12, 20, 24, 28, 32, 40
pQ, pG, pU = 6, 12, 14
sW, sC, sRB, sIDX, sKa, sKg, sXo0, sXo1, sLW, sLX, sLH = range(44, 55)
sST = 55
sW2o, sSD, sHX = 60, 61, 62
sTYP, sTOK = 64, 63
sSH = sTYP
sa, sb, sc_, sd = 66, 67, 68, 69
sAr, sPoll, sL2E = sKa, 28, 56

class Regs: pass
def srd23(d, n): return [I(f's_mov_b32 s{d+2}, {n:#x}'), I(f's_mov_b32 s{d+3}, 0x20000')]
def flat(gs): return [i for g in gs for i in g]
def dma(voff, srdr, soff, ldsbase_s, ldsimm, tag, off=0):
    so = f's{soff}' if soff is not None else '0'
    return [I(f's_add_u32 m0, s{ldsbase_s}, {ldsimm - off}'),
            I(f'buffer_load_dwordx4 v{voff}, s[{srdr}:{srdr+3}], {so} offen' + (f' offset:{off}' if off else '') + ' lds', tag)]

def common():
    R = Regs()
    for k, n in enumerate('L L16 t0 t1 t2 one W2d xo av ex a4'.split()): setattr(R, n, 1 + k)
    R.wr = 12; R.gp = 16
    for k, n in enumerate('Xd Xh Va Vb Vc Xr0 Xr1 Wa Wb Ma Mb Sv s16 sg idx fs'.split()): setattr(R, n, 18 + k)
    R.ones = 34
    R.xr, R.s1, R.s2, R.u0, R.u1, R.p1, R.p2, R.at, R.junk, R.c1, R.c2, R.cv = 184, 188, 189, 190, 191, 174, 175, 176, 177, 178, 179, 192
    t0, t1, t2, u0, u1 = R.t0, R.t1, R.t2, R.u0, R.u1
    o = [I('s_cmp_ge_u32 s2, 256'), I('s_cbranch_scc1 L_exit')] + stamp('entry')
    o += [I(f's_load_dwordx2 s[{sX}:{sX+1}], s[0:1], 0'), I('s_load_dwordx16 s[4:19], s[0:1], 0'), I(f's_load_dwordx4 s[{sDbg}:{sDbg+3}], s[0:1], 64'),
          I(f'v_readfirstlane_b32 s{sW}, v0'), I(f'v_lshrrev_b32 v{t0}, 4, v0'), I(f'v_lshrrev_b32 v{u0}, 3, v0'),
          I(f's_bfe_u32 s{sa}, s2, 0x10002'), I(f's_bfe_u32 s{sb}, s2, 0x30003'), I(f's_lshl3_add_u32 s{sRB}, s{sa}, s{sb}'),
          I(f'v_bitop3_b32 v{t1}, v{t0}, v0, 7 bitop3:0x28'),
          I(f's_lshl_b32 s{sLX}, s{sW}, 4'), I(f's_lshl_b32 s{sXo0}, s{sRB}, 17'), I(f'v_lshlrev_b32 v{t1}, 4, v{t1}'),
          ] + ([I(f's_and_b32 s{sa}, s2, 3'), I(f's_lshr_b32 s{sb}, s2, 6'), I(f's_lshl2_add_u32 s{sa}, s{sa}, s{sb}'), I(f's_lshl_b32 s{sa}, s{sa}, 13'), I(f's_add_u32 s{sTOK}, s{sa}, s{sXo0}')]
               if TOKL else [I(f's_lshl_b32 s{sTOK}, s2, 13')]) + [I(f'v_lshlrev_b32 v{R.L16}, 4, v0'), I(f'v_lshl_add_u32 v{R.Xd}, v{u0}, 10, v{t1}')] + srd23(sX, 2048 * 1024)
    o += [I(f's_getpc_b64 s[{sa}:{sa+1}]'), I(f's_lshr_b32 s{sc_}, s2, 3'), I(f's_lshl_b32 s{sc_}, s{sc_}, 4'), I(f'v_lshrrev_b32 v{t2}, 5, v0'),
          I(f'v_add_lshl_u32 v{t1}, v{t2}, s{sc_}, 7'), I(f'global_load_dword v{R.junk}, v{t1}, s[{sa}:{sa+1}]', 'pf'),
          I(f's_add_u32 s{sXo1}, s{sXo0}, 0x10000'), I(f's_add_u32 m0, s{sLX}, {XBASE + 2048}'), I('s_waitcnt lgkmcnt(0)')] + stamp('karg')
    row = [I(f'buffer_load_dwordx4 {v(R.xr,4)}, v{R.L16}, s[{sX}:{sX+3}], s{sTOK} offen', 'row')]
    if not ROWL: o += row
    o += dma(R.Xd, sX, sXo0, sLX, XBASE + 2048, 'X0')[1:] + dma(R.Xd, sX, sXo1, sLX, XBASE + 2048 + 8192, 'X0')
    pa, pb, ca, cb, cc_ = sST, sST + 1, sST + 2, sST + 3, sST + 4
    o += [I(f'v_and_b32 v{t0}, 4, v{t0}'), I(f's_lshr_b32 s{sW}, s{sW}, 6'), I(f'v_and_or_b32 v{t0}, v{u0}, 2, v{t0}'),
          I(f's_and_b32 s{sa}, s2, 3'), I(f's_lshr_b32 s{sb}, s2, 7'), I(f's_lshl1_add_u32 s{sIDX}, s{sa}, s{sb}'),
          I(f'v_bitop3_b32 v{t0}, v{t0}, v0, 7 bitop3:0x28'), I(f's_and_b32 s{sC}, s{sW}, 3'), I(f's_lshl_b32 s{sLW}, s{sC}, 10'),
          I(f'v_lshlrev_b32 v{t0}, 4, v{t0}'), I(f'v_and_b32 v{u1}, 31, v{u0}'),
          I(f's_mov_b32 s{sA+3}, 0x20000'), I(f's_mov_b32 s{sB+3}, 0x20000'), I(f's_movk_i32 s{sc_}, 3584'), I(f's_lshr_b32 s{sLH}, s{sW}, 2'),
          I('s_bitcmp1_b32 s2, 6'), I('s_cbranch_scc1 L_pB'),
          I(f's_movk_i32 s{pa}, 3072'), I(f's_lshl_b32 s{sa}, s{sIDX}, 7'), I(f's_xor_b32 s{cc_}, s{sa}, {GX * 128}'), I(f's_add_u32 s{cc_}, s{cc_}, 2560'),
          I(f's_lshl_b32 s{sb}, 1024, s{sLH}'), I(f's_add_u32 s{ca}, s{sa}, s{sb}'),
          I(f's_cmp_eq_u32 s{sLH}, 0'), I(f's_cselect_b32 s{pb}, s{pa}, s{sc_}'), I(f's_cselect_b32 s{cb}, s{sa}, s{cc_}'),
          I(f's_cselect_b64 s[{sB}:{sB+1}], s[{pQ}:{pQ+1}], s[{pG}:{pG+1}]'), I(f's_mov_b64 s[{sA}:{sA+1}], s[{pQ}:{pQ+1}]'),
          I('s_branch L_pJ'),
          I('L_pB:'),
          I(f's_mov_b32 s{pa}, s{sc_}'), I(f's_mov_b32 s{pb}, s{sc_}'), I(f's_mul_i32 s{sa}, s{sIDX}, 320'),
          I(f's_bitcmp1_b32 s{sIDX}, 0'), I(f's_cselect_b32 s{ca}, 64, 0'), I(f's_cselect_b32 s{cc_}, 0, 256'),
          I(f's_add_u32 s{ca}, s{ca}, s{sa}'), I(f's_add_u32 s{cc_}, s{cc_}, s{sa}'), I(f's_add_u32 s{cb}, s{ca}, 128'),
          I(f's_cmp_eq_u32 s{sLH}, 0'),
          I(f's_cselect_b64 s[{sA}:{sA+1}], s[{pG}:{pG+1}], s[{pU}:{pU+1}]'), I(f's_cselect_b64 s[{sB}:{sB+1}], s[{pG}:{pG+1}], s[{pU}:{pU+1}]'),
          I('L_pJ:'),
          I(f'v_mad_u32_u24 v{R.Va}, v{u1}, s{pa}, v{t0}'), I(f'v_mad_u32_u24 v{R.Vb}, v{u1}, s{pb}, v{t0}'),
          I(f's_lshl_b32 s{sA+2}, s{pa}, 9'), I(f's_lshl_b32 s{sB+2}, s{pb}, 9'), I(f's_lshl_b32 s{sa}, s{sLH}, 13'), I(f's_add_u32 s{sa}, s{sa}, s{sLW}')]
    o += dma(R.Va, sA, ca, sa, WBASE, 'W0') + [I(f's_lshl_b32 s{sb}, s{pa}, 5'), I(f's_add_u32 s{sb}, s{sb}, s{ca}')] + dma(R.Va, sA, sb, sa, WBASE + 4096, 'W0') + (row if ROWL else [])
    o += [I(f'v_add_u32 v{R.Va}, s{ca}, v{R.Va}'), I(f'v_add_u32 v{R.Vb}, s{cb}, v{R.Vb}'), I(f'v_and_b32 v{R.L}, 63, v0')] + stamp('dma0')
    o += [I('s_bitcmp1_b32 s2, 6'), I('s_cbranch_scc1 L_B'), I(f's_cmp_eq_u32 s{sLH}, 0'), I('s_cbranch_scc0 L_A1'), I('s_branch L_A0'),
          I('L_B:'), I(f's_cmp_eq_u32 s{sLH}, 0'), I('s_cbranch_scc0 L_B1'), I('s_branch L_B0'),
          I('L_exit:'), I('s_endpgm')]
    return R, o

def halo_dma(R, S):
    g = dma(R.Xh, sX, None, sLH, XBASE + (S % 3) * XSLOT, f'X{S}', KP[S] * 128)
    return [g[0], I(f's_mov_b32 exec_lo, s{sHX}'), I('s_mov_b32 exec_hi, 0'), g[1], I('s_mov_b64 exec, -1')]

def first_loads(R, typ, th):
    if th == 0: return []
    L, t0, t1, t2, u0, u1, cc_ = R.L, R.t0, R.t1, R.t2, R.u0, R.u1, sST + 4
    o = srd23(sCc, 512 * 3584)
    if typ == 'A':
        o += [I(f's_mov_b64 s[{sCc}:{sCc+1}], s[{pU}:{pU+1}]')]
        o += [I(f'v_lshrrev_b32 v{t0}, 3, v{L}'), I(f's_lshl_b32 s{sa}, s{sC}, 2'), I(f'v_add_u32 v{t0}, s{sa}, v{t0}'),
              I(f'v_lshrrev_b32 v{t1}, 1, v{t0}'), I(f'v_bitop3_b32 v{t1}, v{t1}, v{L}, 7 bitop3:0x28'), I(f'v_lshlrev_b32 v{t1}, 4, v{t1}'),
              I(f'v_lshl_add_u32 v{t0}, v{t0}, 10, v{t1}'), I(f's_sub_u32 s{sb}, s{sXo0}, 0x4000'), I(f's_cselect_b32 s{sb}, {OOB}, s{sb}'),
              I(f'v_add_u32 v{R.Xh}, s{sb}, v{t0}'), I(f's_lshl_b32 s{sLH}, s{sC}, 9'),
              I(f's_cmp_eq_u32 s{sC}, 0'), I(f's_cselect_b32 s{sHX}, {0xffffff00 if HONES else -1}, -1'), ] + halo_dma(R, 0)
    else:
        o += [I(f'v_bitop3_b32 v{t2}, v{t2}, v0, 3 bitop3:0x28'), I(f'v_lshl_add_u32 v{t2}, v{t2}, 4, s{cc_}'),
              I(f'v_bfe_u32 v{t1}, v0, 2, 4'), I(f'v_and_or_b32 v{t1}, v{u0}, 16, v{t1}'), I(f'v_mad_u32_u24 v{R.Vc}, v{t1}, s{sc_}, v{t2}'),
              I(f's_bitcmp1_b32 s{sC}, 0'), I(f's_cselect_b64 s[{sCc}:{sCc+1}], s[{pU}:{pU+1}], s[{pG}:{pG+1}]')]
    return o

def pf_mine(typ, th, k):
    if EXB >> k & 1: return PI[k] < 99 and typ == 'A'
    return PI[k] < 99 and (th == k & 1 or (typ == 'A' and EXM >> k & 1))
def pf_load(R, typ, th, k):
    base = sPF2 if k == 3 else sPF1
    ld = f'global_load_dword v{R.junk}, v{208 + k}, s[{base}:{base+1}]'
    if typ == 'A' and EXM >> k & 1: return [I('s_bitcmp1_b32 s2, 7'), I(f's_cbranch_scc1 L_A{th}p{k}'), I('RAW ' + ld), I(f'L_A{th}p{k}:')]
    return [I(ld)]
def pf_offset(R, typ, th, k):
    if not pf_mine(typ, th, k): return []
    L, d, t0 = R.L, 208 + k, R.t0
    o = [I(f's_or_b32 s{sb}, s2, {0 if th == k & 1 else 64 if EXB >> k & 1 else 128}')]
    if k < 3:
        S0, n = PB[k], PB[k + 1] - PB[k]
        return o + [I(f's_cmp_eq_u32 s{sC}, 0'), I(f's_cselect_b32 s{sa}, 6, 7'), I(f's_mul_i32 s{sb}, s{sb}, {n}'), I(f's_add_u32 s{sb}, s{sb}, {256 * S0}'), I(f's_mul_i32 s{sb}, s{sb}, s{sa}'),
                    I(f's_mul_i32 s{sa}, s{sa}, {n}'), I(f's_sub_u32 s{sa}, s{sa}, 1'), I(f's_cmp_eq_u32 s{sC}, 3'), I(f's_cselect_b32 s{sa}, 0, s{sa}'),
                    I(f'v_min_u32 v{d}, s{sa}, v{L}'), I(f'v_add_lshl_u32 v{d}, v{d}, s{sb}, 7')]
    return o + [I(f's_sub_u32 s{sd}, s{sC}, 1'), I(f's_cselect_b64 s[{sPF2}:{sPF2+1}], s[{sWo}:{sWo+1}], s[{sWd}:{sWd+1}]'),
                I(f's_cselect_b32 s{sc_}, 16, 56'), I(f's_cselect_b32 s{sd}, 0, s{sd}'), I(f's_mul_i32 s{sd}, s{sd}, 19'),
                I(f'v_min_u32 v{d}, 18, v{L}'), I(f'v_add_u32 v{d}, s{sd}, v{d}'), I(f's_sub_u32 s{sd}, s{sc_}, 1'), I(f'v_min_u32 v{d}, s{sd}, v{d}'),
                I(f's_mul_i32 s{sc_}, s{sc_}, s{sb}'), I(f'v_and_b32 v{t0}, 7, v{d}'), I(f'v_cmp_eq_u32 vcc, {CPY}, v{t0}'), I(f'v_add_lshl_u32 v{d}, v{d}, s{sc_}, 7'),
                I(f'v_xor_b32 v{t0}, 128, v{d}'), I(f'v_cndmask_b32 v{d}, v{d}, v{t0}, vcc')]

def setup_a(R, typ, th):
    L, t0, t1, t2, u0, u1 = R.L, R.t0, R.t1, R.t2, R.u0, R.u1
    o = [I(f's_mov_b32 s{sKa}, 0'), I(f's_mov_b32 s{sKg}, 0'), I(f'v_lshlrev_b32 v{R.L16}, 4, v{L}'),
         I(f's_cmp_eq_u32 s{sC}, 0'), I(f's_cselect_b64 s[6:7], s[{pQ}:{pQ+1}], s[{pG}:{pG+1}]'),
         I(f's_cmp_eq_u32 s{sC}, 2'), I(f's_cselect_b64 s[6:7], s[{pU}:{pU+1}], s[6:7]')] + pf_offset(R, typ, th, 0)
    R.na = len(o)
    o += [I(f'v_and_b32 v{R.a4}, 15, v{L}'), I(f'v_lshrrev_b32 v{t1}, 4, v{L}'), I(f'v_bfe_u32 v{u0}, v{L}, 1, 3'),
          I(f'v_xor_b32 v{u0}, v{u0}, v{t1}'), I(f'v_lshlrev_b32 v{u0}, 4, v{u0}'), I(f'v_lshl_add_u32 v{R.Xr0}, v{R.a4}, 7, v{u0}'),
          I(f'v_xor_b32 v{R.Xr1}, 64, v{R.Xr0}'),
          I(f'v_bfe_u32 v{u0}, v{L}, 3, 2'), I(f'v_xor_b32 v{u0}, s{sC}, v{u0}'), I(f'v_lshlrev_b32 v{u0}, 5, v{u0}'),
          I(f'v_lshl_add_u32 v{u0}, v{t1}, 10, v{u0}'), I(f'v_bfe_u32 v{u1}, v{L}, 2, 2'), I(f'v_lshl_add_u32 v{u0}, v{u1}, 7, v{u0}'),
          I(f'v_and_b32 v{t0}, 3, v{L}'), I(f'v_lshl_add_u32 v{u0}, v{t0}, 3, v{u0}'),
          I(f'v_add_u32 v{R.Wa}, {WBASE}, v{u0}'), I(f'v_add_u32 v{R.Wb}, {WBASE + 3*WSLOT}, v{u0}')]
    if typ == 'B':
        o += [I(f'v_bfe_u32 v{u0}, v{L}, 4, 1'), I(f'v_and_b32 v{t0}, 2, v{L}'), I(f'v_or_b32 v{t2}, v{u0}, v{t0}'),
              I(f'v_xor_b32 v{t2}, s{sC}, v{t2}'), I(f'v_lshlrev_b32 v{t2}, 4, v{t2}'),
              I(f'v_lshl_add_u32 v{t2}, v{t0}, 9, v{t2}'), I(f'v_lshl_add_u32 v{t2}, v{u0}, 9, v{t2}'),
              I(f'v_lshl_add_u32 v{t2}, v{u1}, 6, v{t2}'), I(f'v_lshrrev_b32 v{u0}, 5, v{L}'), I(f'v_lshl_add_u32 v{t2}, v{u0}, 11, v{t2}'),
              I(f'v_and_b32 v{u0}, 1, v{L}'), I(f'v_lshl_add_u32 v{t2}, v{u0}, 3, v{t2}'),
              I(f'v_add_u32 v{R.Ma}, {WBASE}, v{t2}'), I(f'v_add_u32 v{R.Mb}, {WBASE + 3*WSLOT}, v{t2}')]
    for j in range(4): o.append(I(f'v_mov_b32 v{R.ones + j}, 0x3f803f80'))
    if typ == 'A' and th == 1 and HONES:
        o += [I(f'v_and_b32 v{t0}, 0x70, v{R.L16}')] + [I(f'ds_write_b128 v{t0}, {v(R.ones,4)} offset:{XBASE + k*XSLOT}') for k in range(3)]
    for p in R.csp:
        for j in range(4): o.append(I(f'v_mov_b32 v{R.cs[p] + j}, 0'))
    if th == 0: o += [I(f'v_bfe_i32 v{R.idx}, v{L}, 0, 1'), I(f'v_and_b32 v{R.idx}, 0xaaaaaaaa, v{R.idx}'), I(f'v_or_b32 v{R.idx}, 0x44444444, v{R.idx}')]
    o += [I(f's_add_u32 s{sWS}, s{sDbg+2}, {WSO << 20}'), I(f's_addc_u32 s{sWS+1}, s{sDbg+3}, 0'), I(f's_mov_b64 s[{sOut}:{sOut+1}], s[18:19]')]
    o += srd23(sWS, WS_BYTES) + srd23(sDbg, 256) + srd23(sWo, 512 * 1024) + srd23(sWd, 1792 * 1024) + srd23(sOut, 2048 * 1024)
    return o

def setup_b(R, typ, th):
    L, L16, t0, t1, t2, wr = R.L, R.L16, R.t0, R.t1, R.t2, R.wr
    sCT, sTB = sW2o, sSD
    o = [I(f's_and_b32 s{sa}, s2, 7'), I(f's_bfe_u32 s{sb}, s2, 0x20003'), I(f's_lshl2_add_u32 s{sa}, s{sa}, s{sb}'), I(f's_lshr_b32 s{sCT}, s2, 5'),
         I(f's_and_b32 s{sb}, s{sa}, 30'), I(f's_add_u32 s{sTB}, s{sa}, s{sb}'),
         I(f's_lshl3_add_u32 s{sa}, s{sa}, s{sCT}'), I(f's_lshl_b32 s{sa}, s{sa}, 9'), I(f's_add_u32 s{sTYP}, s{sa}, {FLAG_OFF + th*256}'),
         I(f's_lshl_b32 s{sa}, s{sC}, 28'), I(f'v_lshl_add_u32 v{t0}, v{L}, 2, s{sa}'), I(f'v_mov_b32 v{R.s1}, 0'), I(f'v_mov_b32 v{R.s2}, 0'),
         I(f'buffer_store_dword v{R.s1}, v{t0}, s[{sWS}:{sWS+3}], s{sTYP} offen{SC}', 'rst'),
         I(f'ds_write_b32 v{R.s1}, v{R.s1} offset:{CNT + 4*th}')] + ([I(f'ds_write_b32 v{R.s1}, v{R.s1} offset:{CNT + 8}')] if th else [])
    if th == 1:
        o += [I(f's_bitcmp1_b32 s{sC}, 1'), I(f's_cselect_b64 s[{sWo}:{sWo+1}], s[{sWd}:{sWd+1}], s[{sWo}:{sWo+1}]'), I(f's_cselect_b32 s{sWo+2}, s{sWd+2}, s{sWo+2}'),
              I(f's_cselect_b32 s{sb}, 7, 2'), I(f's_cselect_b32 s{sDl}, 512, 0'), I(f'v_lshrrev_b32 v{t0}, 3, v{L}'), I(f'v_cmp_gt_u32 vcc, s{sb}, v{t0}'),
              I(f's_mul_i32 s{sb}, s{sb}, s2'), I(f'v_add_u32 v{t0}, s{sb}, v{t0}'), I(f'v_and_b32 v{t1}, 0x70, v{L16}'), I(f'v_lshl_add_u32 v{R.c1}, v{t0}, 10, v{t1}'),
              I(f'v_add_u32 v{t0}, s{sDl}, v{t0}'), I(f'v_lshl_add_u32 v{R.c2}, v{t0}, 7, v{t1}'), I(f's_bitcmp1_b32 s{sC}, 0'), I(f's_cselect_b64 vcc, 0, vcc'), I(f'v_mov_b32 v{t1}, {OOB}'),
              I(f'v_add_u32 v{R.c2}, {CPY_OFF}, v{R.c2}'), I(f'v_cndmask_b32 v{R.c1}, v{t1}, v{R.c1}, vcc'), I(f'v_cndmask_b32 v{R.c2}, v{t1}, v{R.c2}, vcc')]
        o += [I(f's_and_b32 s{sb}, s{sIDX}, 3'), I(f's_lshl_b32 s{sb}, s{sb}, 6'), I(f's_add_u32 s{sb}, s{sb}, 256'), I(f'v_subrev_u32 v{R.at}, s{sb}, v0'),
              I(f's_lshl_b32 s{sb}, s{sRB}, 4'), I(f'v_lshl_add_u32 v{R.at}, v{R.at}, 22, s{sb}')]
    o += [I(f'v_mov_b32 v{R.one}, 1')]
    for k in (1, 2, 3):
        if PI[k] <= max(SBI[th]): o += pf_offset(R, typ, th, k)
    early = len(o)
    for k in (1, 2, 3):
        if PI[k] > max(SBI[th]): o += pf_offset(R, typ, th, k)
    o += [I(f's_lshl_b32 s{sa}, s{sRB}, 13'), I(f's_lshl2_add_u32 s{sa}, s{sIDX}, s{sa}'), I(f's_add_u32 s{sa}, s{sa}, {FLAG_OFF + th*128 + (256 if typ == "A" else 0)}'),
          I(f'v_lshl_add_u32 v{R.fs}, v{R.a4}, 9, s{sa}'), I(f'v_lshrrev_b32 v{t0}, 4, v{L}'), I(f'v_lshl_add_u32 v{R.fs}, v{t0}, 28, v{R.fs}')]
    o += [I(f's_mul_i32 s{sa}, s{sRB}, {4*144*1024}')] + ([I(f's_add_u32 s{sa}, s{sa}, {2*144*1024}')] if th else [])
    if typ == 'A':
        o += [I(f's_add_u32 s{sa}, s{sa}, s{sLW}'), I(f's_lshl_b32 s{sb}, s{sIDX}, 12'), I(f's_add_u32 s{sST+2}, s{sa}, s{sb}'),
              I(f's_xor_b32 s{sb}, s{sb}, {GX * 4096}'), I(f's_add_u32 s{sST}, s{sa}, s{sb}'), I(f's_add_u32 s{sST}, s{sST}, {(32+80)*1024}')]
    else:
        o += [I(f's_mul_i32 s{sb}, s{sIDX}, {320*32}'), I(f's_add_u32 s{sa}, s{sa}, s{sb}'), I(f's_add_u32 s{sa}, s{sa}, 0x8000'),
              I(f's_bitcmp1_b32 s{sIDX}, 0'), I(f's_cselect_b32 s{sb}, 2048, 0'), I(f's_cselect_b32 s{sc_}, 0, 8192'),
              I(f's_add_u32 s{sST}, s{sa}, s{sb}'), I(f's_add_u32 s{sST}, s{sST}, s{sLW}'), I(f's_add_u32 s{sST+2}, s{sST}, 4096'),
              I(f's_add_u32 s{sa}, s{sa}, s{sc_}'), I(f's_lshl_b32 s{sb}, s{sC}, 9'), I(f's_add_u32 s{sST+4}, s{sa}, s{sb}')]
    o += [I(f's_add_u32 s{sST+1}, s{sST}, {144*1024}'), I(f's_add_u32 s{sST+3}, s{sST+2}, {144*1024}')]
    if th == 0:
        o += [I(f's_mul_i32 s{sd}, s{sC}, 20'), I(f's_add_u32 s{sc_}, s{sd}, 32'), I(f's_lshl3_add_u32 s{sFo}, s{sC}, s{sTYP}')]
    else:
        o += [I(f's_and_b32 s{sb}, s{sC}, 1'), I(f's_lshl4_add_u32 s{sFo}, s{sb}, s{sTYP}'),
              I(f's_bitcmp1_b32 s{sC}, 1'), I(f's_cselect_b32 s{sb}, 48, 0'), I(f's_cselect_b32 s{sc_}, 32, 0'),
              I(f's_lshl4_add_u32 s{sd}, s{sC}, s{sb}'), I(f's_add_u32 s{sc_}, s{sc_}, s{sd}')]
    o += [I(f's_lshr_b32 s{sb}, {ROTC}, s{sCT}'), I(f's_and_b32 s{sb}, s{sb}, s{sTB}'), I(f's_bitcmp1_b32 s{sb}, 0'), I(f's_cselect_b32 s{sa}, {SPLIT[th]}, 0'),
          I(f's_cselect_b32 s{sDl}, {-SPLIT[th]}, {SPLIT[th]}'), I(f's_add_u32 s{sd}, s{sd}, s{sa}'), I(f's_add_u32 s{sc_}, s{sc_}, s{sa}'), I(f's_lshl_b32 s{sDl}, s{sDl}, 2')]
    o += [I(f's_mul_i32 s{sa}, s{sTB}, 144'), I(f's_add_u32 s{sa}, s{sa}, s{sc_}'), I(f's_lshl_b32 s{sa}, s{sa}, 10'),
          I(f'v_and_b32 v{t0}, 0x300, v{L16}'), I(f'v_add3_u32 v{R.av}, v{t0}, v{L16}, s{sa}'),
          I(f'v_lshrrev_b32 v{t1}, 3, v{L}'), I(f'v_and_b32 v{t0}, 6, v{t1}'), I(f'v_bitop3_b32 v{t0}, v{t0}, v{L}, 7 bitop3:0x28'),
          I(f'v_lshlrev_b32 v{t0}, 4, v{t0}'), I(f'v_and_b32 v{t2}, 4, v{t1}'), I(f'v_add_u32 v{t1}, v{t1}, v{t2}'),
          I(f's_lshl_b32 s{sCT}, s{sCT}, 7'), I(f's_lshl_b32 s{sd}, s{sd}, 14'), I(f's_add_u32 s{sd}, s{sd}, s{sCT}'),
          I(f's_lshl_b32 s{sc_}, s{sc_}, 11'), I(f's_add_u32 s{sc_}, s{sc_}, {CPY_OFF}'),
          I(f's_cmp_eq_u32 s{sCT}, {CPY * 128}'), I(f's_cselect_b32 s{sd}, s{sc_}, s{sd}'), I(f's_cselect_b32 s{sSH}, 9, 12'), I(f's_cselect_b32 s{sb}, 7, 10'),
          I(f'v_lshl_add_u32 v{t0}, v{t1}, s{sb}, v{t0}'), I(f'v_add_u32 v{R.W2d}, s{sd}, v{t0}'),
          I(f'v_lshrrev_b32 v{t0}, 4, v0'), I(f'v_lshlrev_b32 v{t1}, 3, v{R.a4}'), I(f'v_lshl_add_u32 v{t0}, v{t0}, 10, v{t1}'),
          I(f's_lshl_b32 s{sa}, s{sTB}, 15'), I(f's_add_u32 s{sa}, s{sa}, s{sCT}'), I(f'v_add_u32 v{R.xo}, s{sa}, v{t0}'),
          I(f'v_lshrrev_b32 v{t0}, 5, v{L}'), I(f'v_lshl_add_u32 v{t0}, v{t0}, 13, s{sLX}'), I(f'v_bfe_u32 v{t1}, v{L}, 2, 3'), I(f'v_lshl_add_u32 v{t0}, v{t1}, 7, v{t0}'),
          I(f'v_bfe_u32 v{t1}, v{L}, 3, 2'), I(f'v_lshl_add_u32 v{t0}, v{t1}, 5, v{t0}'), I(f'v_and_b32 v{t1}, 3, v{L}'), I(f'v_lshl_add_u32 v{wr}, v{t1}, 3, v{t0}')]
    o += [I(f'v_xor_b32 v{wr+p}, {32*p}, v{wr}') for p in (1, 2, 3)]
    o += [I(f'v_add_u32 v{WIN[k][0]+p}, {WIN[k][1]}, v{wr+p}') for k in range(1, 3 - th) for p in range(4)]
    if th == 1:
        o += [I(f's_lshl_b32 s{sa}, s{sRB}, 11'), I(f's_sub_u32 s{sa}, s{sa}, 256'), I(f's_cselect_b32 s{sb}, 256, 0') if typ == 'A' else I(f's_movk_i32 s{sb}, 256'),
              I(f's_add_u32 s{sa}, s{sa}, {STAT_OFF}'), I(f's_min_u32 s{sSD}, s{sLW}, 2048'), I(f'v_add_u32 v{R.Sv}, s{sSD}, v{L16}'), I(f'v_subrev_u32 v{t0}, s{sb}, v{R.Sv}'),
              I(f'v_add_u32 v{R.Sv}, s{sa}, v{R.Sv}'), I(f's_sub_u32 s{sb}, 2304, s{sb}'), I(f'v_cmp_gt_u32 vcc, s{sb}, v{t0}'), I(f'v_mov_b32 v{t1}, {OOB}'),
              I(f'v_cndmask_b32 v{R.Sv}, v{t1}, v{R.Sv}, vcc')]
    o += [I(f's_lshl_b32 s{sa}, s{sC}, 6'), I(f'v_lshlrev_b32 v{R.s16}, 4, v{R.a4}'), I(f'v_lshl_add_u32 v{t2}, v{R.a4}, 2, s{sa}'),
          I(f'v_and_b32 v{R.sg}, 0x30, v{L}'), I(f'v_add_u32 v{t0}, s{sa}, v{R.sg}')]
    if typ == 'A': o += [I(f's_lshl_b32 s{sa}, s{sC}, 9'), I(f'v_lshl_add_u32 v{R.ex}, v{L}, 3, s{sa}')]
    else: o += [I(f'v_and_b32 v{t1}, 0x200, v{L16}'), I(f'v_add_u32 v{t1}, v{t1}, v{R.s16}'),
                I(f'v_lshrrev_b32 v{R.ex}, 5, v{L}'), I(f'v_mul_u32_u24 v{R.ex}, {144*1024 - 512}, v{R.ex}'), I(f'v_add_u32 v{R.ex}, v{R.ex}, v{L16}')]
    u0, u1 = 182, 183
    o += [I(f'v_lshrrev_b32 v{u0}, 3, v{L}'), I(f'v_and_b32 v{u0}, 6, v{u0}'), I(f's_movk_i32 s{sa}, 0x9c'), I(f'v_lshrrev_b32 v{u0}, v{u0}, s{sa}'), I(f'v_lshrrev_b32 v{u1}, 2, v{L}'),
          I(f'v_bitop3_b32 v{R.gp}, v{u0}, v{u1}, 3 bitop3:0x28'), I(f'v_lshrrev_b32 v{u1}, 4, v0'), I(f'v_lshlrev_b32 v{u0}, 2, v{R.gp}'), I(f'v_sub_u32 v{u0}, v{u0}, v{u1}'),
          I(f's_add_u32 s{sa}, s{sC}, {64 + 16*th}'), I(f'v_add_u32 v{u0}, s{sa}, v{u0}'), I(f'v_lshl_add_u32 v{R.a4}, v{u0}, 10, v{R.xo}')]
    return o[:early], o[early:]

def bf16r(d, src):
    return [I(f'v_cvt_pk_bf16_f32 v{d}, v{src}, v{src}'), I(f'v_and_b32 v{d}, 0xffff0000, v{d}')]

def row_stats(R):
    a1, a2, T, f, y = R.s1, R.s2, R.xr, R.xr, 200
    t = a2; u = R.u1
    def wave_sum(a):
        return [I(f'v_add_f32_dpp v{a}, v{a}, v{a} row_ror:{k} row_mask:0xf bank_mask:0xf') for k in (8, 4, 2, 1)] + flat(
            [I(f'v_mov_b32 v{u}, v{a}'), I(f'v_permlane{w}_swap_b32 v{a}, v{u}'), I(f'v_add_f32 v{a}, v{a}, v{u}')] for w in (16, 32)) + [I(f'v_mul_f32 v{a}, 0x3b000000, v{a}')]
    o = flat([I(f'v_lshlrev_b32 v{y+2*d}, 16, v{f+d}'), I(f'v_and_b32 v{y+2*d+1}, 0xffff0000, v{f+d}')] for d in range(4))
    o += [pk('add', T, y, y + 2), pk('add', T + 2, y + 4, y + 6), pk('add', T, T, T + 2), I(f'v_add_f32 v{a1}, v{T}, v{T+1}'),
          I(f's_add_u32 s{sTOK}, s{sTOK}, s{sLX}'), I(f's_lshr_b32 s{sTOK}, s{sTOK}, 6')] + wave_sum(a1)
    o += [pk('add', y + 2*d, y + 2*d, a1, None, 'op_sel_hi:[1,0] neg_lo:[0,1] neg_hi:[0,1]') for d in range(4)]
    o += [pk('mul', T, y, y)] + [pk('fma', T, y + 2*d, y + 2*d, T) for d in (1, 2, 3)] + [I(f'v_add_f32 v{a2}, v{T}, v{T+1}'),
          I(f's_add_u32 s{sTOK}, s{sTOK}, {STAT_OFF}'), I(f'v_lshlrev_b32 v{R.u0}, 24, v{R.L}')] + wave_sum(a2)
    o += bf16r(T, a1) + bf16r(t, a2) + [I(f'v_add_f32 v{t}, 0x3727c5ac, v{t}')] + bf16r(t, t) + [I(f'v_sqrt_f32 v{t}, v{t}')] + bf16r(t, t)
    o += [I(f'v_rcp_f32 v{T+1}, v{t}'), I(f'v_mul_f32 v{T+3}, v{t}, v{t}'), I(f'v_mul_f32 v{T+2}, {LOG2E | 0x80000000:#x}, v{T+1}')]
    o += [I(f'buffer_store_dwordx4 {v(T,4)}, v{R.u0}, s[{sWS}:{sWS+3}], s{sTOK} offen{SC}', 'rst')]
    return o

def w2_dma(R, th, t, h):
    pre = []; n = SPLIT[th]
    if t == n and h == 0: pre = [I(f's_lshl_b32 s{sW2o}, s{sDl}, s{sSH}'), I(f'v_add_u32 v{R.W2d}, s{sW2o}, v{R.W2d}')]
    if t == 0 and h == 0:
        d = sWo if th else sWd
        pre = [I(f's_cmp_eq_u32 s{sSH}, 9'), I(f's_cselect_b64 s[{d}:{d+1}], s[{sWS}:{sWS+1}], s[{d}:{d+1}]'), I(f's_cselect_b32 s{d+2}, s{sWS+2}, s{d+2}')]
    g = dma(R.W2d, sWo if th else sWd, sW2o, sLX, SLOT[th][t % n] + 8192 * h, f'U{t}')
    return pre + [g[0], I(f's_lshl_b32 s{sW2o}, {8 * (t % n >> 1) + 4 * h + (t & 1)}, s{sSH}'), g[1]]

ORDER = {'A': [1, 2, 0, 3, 4], 'B': [0, 2, 1, 3, 4]}
def load_queue(R, typ, th):
    q = []
    for i in range(1, 16):
        S = i // 2
        if i % 2 == 0:
            fr = -1 if S < 3 else 2 * S - 5
            for e in range(2): q.append((fr, i, dma(R.Xd, sX, sXo1 if e else sXo0, sLX, XBASE + (S % 3) * XSLOT + 2048 + e * 8192, f'X{S}', KP[S] * 128)))
            if typ == 'A' and th == 1: q.append((fr, i, halo_dma(R, S)))
        for k in ([th] if i % 2 == 0 else [3, 4] if th else [2]):
            vo, sr = [(R.Va, sA), (R.Va, sA), (R.Vb, sB), (R.Vb, sB), (R.Vb if typ == 'A' else R.Vc, sCc)][k]
            for h in range(2):
                n = 10 * S + 2 * k + h; g = dma(vo, sr, sKa, sLW, WBASE + n % 25 * 4096, f'W{i}')
                so = (KP[S] * 64 + h * 32) * (3072 if (typ == 'A' and k < 3) else 3584)
                q.append((-1 if n < 25 else blk_iv(n - 25) + 1, i, [g[0], I(f's_mov_b32 s{sKa}, {so}'), g[1]]))
    fr = 0
    for t in range(SPLIT[th]):
        for h in range(2):
            fr = max(fr, free_from((SLOT[th][t] & ~4096 if SLOT[th][t] == PAIR[6] + 4096 else SLOT[th][t]) + 8192 * h)) if (t, h) != (0, 0) else free_from(SLOT[th][0])
            q.append((fr, 99, w2_dma(R, th, t, h)))
    return q

def reads(R, typ, th, i):
    S = i // 2; xo = XBASE + (S % 3) * XSLOT + th * 8192
    def w(k):
        o = []
        for h in range(2):
            pos = (10 * S + 2 * k + h) % 25; mixed = typ == 'B' and k == 4
            r, off = ((R.Ma if mixed else R.Wa), pos * 4096) if pos < 15 else ((R.Mb if mixed else R.Wb), (pos - 15) * 4096)
            o += [I(f'ds_read_b64_tr_b16 {v(R.wf[k] + 4*h + 2*j, 2)}, v{r} offset:{off + (256 if mixed else 512) * j}') for j in range(2)]
        return o
    if i & 1: return w(2) + w(3) + w(4)
    x = [I(f'ds_read_b128 {v(R.xf[h][t], 4)}, v{R.Xr1 if h else R.Xr0} offset:{xo + (t+1)*2048}') for t in [3, 2, 1, 0] + ([-1] if R.halo else []) for h in range(2)]
    return w(0) + x + w(1)

def mfma16(d, a, b, c):
    return I(f'v_mfma_f32_16x16x32_bf16 {v(d,4)}, {v(a,4)}, {v(b,4)}, ' + (v(c,4) if c is not None else '0'))
def mfmas(R, typ, th, i):
    o = []
    for k in ((2, 3, 4) if i & 1 else (0, 1)):
        p = ORDER[typ][k]
        tiles = [3, 2, 1, 0] + ([-1] if (R.halo and p in (1, 2)) else [])
        if k & 1: tiles = tiles[::-1]
        for n, t in enumerate(tiles):
            for j, h in enumerate((1, 0) if n & 1 else (0, 1)):
                d = R.acc[p][t]; c = None if (i < 2 and j == 0) else d
                if typ == 'A' and p == 2: o.append(mfma16(d, R.xf[h][t], R.wf[k] + 4*h, c))
                else: o.append(mfma16(d, R.wf[k] + 4*h, R.xf[h][t], c))
        if p in R.csp:
            o.append(I(f'v_smfmac_f32_16x16x64_bf16 {v(R.cs[p],4)}, {v(R.ones,4)}, {v(R.wf[k],8)}, v{R.idx}'))
    return o

def pk(op, d, a, b, c=None, mod=''):
    return I(f'v_pk_{op}_f32 {v(d,2)}, {v(a,2)}, {v(b,2)}' + (f', {v(c,2)}' if c is not None else '') + (' ' + mod if mod else ''))
def corr(a, cs, st):
    return [pk('fma', a + r, st, cs + r, a + r, 'op_sel_hi:[0,1,1] neg_lo:[1,0,0] neg_hi:[1,0,0]') for r in (0, 2)]
def ffn_tail(g, u, st, T, out):
    o = [pk('mul', T + r, g + r, st + 2, None, 'op_sel_hi:[1,0]') for r in (0, 2)]
    o += [I(f'v_exp_f32 v{T+r}, v{T+r}') for r in range(4)]
    o += [pk('mul', g + r, g + r, u + r) for r in (0, 2)]
    o += [pk('fma', T + r, st + 2, T + r, st + 2, 'op_sel:[1,0,1]') for r in (0, 2)]
    o += [I(f'v_rcp_f32 v{T+r}, v{T+r}') for r in range(4)]
    o += [pk('mul', g + r, g + r, T + r) for r in (0, 2)]
    o += [I(f'v_cvt_pk_bf16_f32 v{out}, v{g}, v{g+1}'), I(f'v_cvt_pk_bf16_f32 v{out+1}, v{g+2}, v{g+3}')]
    return o
def store_frag(R, q, soff, voff=None):
    return [I(f'v_permlane16_swap_b32 v{q}, v{q+2}'), I(f'v_permlane16_swap_b32 v{q+1}, v{q+3}')] + ([I(f's_mov_b32 exec_lo, {DIAG:#x}')] if DIAG else []) + [
            I(f'buffer_store_dwordx4 {v(q,4)}, v{R.L16 if voff is None else voff}, s[{sWS}:{sWS+3}], s{soff} offen{SC}', 'act')] + ([I('s_mov_b32 exec_lo, -1')] if DIAG else [])

def keep_scc(items):
    out = []
    for i in items:
        if i.mn.startswith(('s_cselect', 's_addc')): out[-1].append(i)
        else: out.append([i])
    return out
def weave(main, fill):
    out = []; k = 0
    for j, g in enumerate(main):
        while k < len(fill) and k * len(main) <= j * len(fill): out.append(fill[k]); k += 1
        out.append(g)
    return flat(out + fill[k:])

def place(m, groups):
    n = len(m); slots = [[] for _ in range(n + 1)]
    for items, a, b in groups:
        a = min(a, n - 1); b = max(min(b, n), a + 1)
        for k, it in enumerate(items):
            slots[1 + a + k * (b - a) // len(items)].extend(it if isinstance(it, list) else [it])
    o = list(slots[0])
    for k in range(n): o += [m[k]] + slots[k + 1]
    return o
def memphase(rd, dm, lead=0):
    rd = list(rd); o = rd[:lead]; rd = rd[lead:]; n0 = len(rd)
    for k, g in enumerate(dm):
        upto = n0 * k // len(dm)
        while n0 - len(rd) < upto: o.append(rd.pop(0))
        if len(g) == 2 and 'm0' in g[0].text and rd and rd[0].kind == 'ds': o += [g[0], rd.pop(0), g[1]]
        else: o += g
    return o + rd

WIN = [(12, 0), (212, _W1), (196, PAIR[6])]
_q = [list(range(216, 256, 4)) + [200, 204, 208] + list(range(192, 84, -4)), list(range(184, 208, 4)) + list(range(216, 256, 4)) + list(range(104, 168, 4))]
WREG = [[q[4 * u: 4 * u + 4] for u in range(len(q) // 4)] for q in _q]
def wread(th, t):
    a = SLOT[th][t % SPLIT[th]]; r, base = max((x for x in WIN if x[1] <= a), key=lambda x: x[1])
    return [I(f'ds_read_b64_tr_b16 {v(WREG[th][t >> 1][p] + 2*(t & 1), 2)}, v{r + p} offset:{a - base}') for p in range(4)]
def wdone(th, t): return waitreg(WREG[th][t >> 1][3] + 2 * (t & 1), 2)
def poll_issue(th, p): return [I(f's_buffer_load_dwordx{2 + 2*th} s[{sPoll}:{sPoll + 1 + 2*th}], s[{sWS}:{sWS+3}], s{sFo} offset:{p*128} glc')]

def stream(R0, typ, th):
    R = copy.copy(R0); A = Alloc(38, 154)
    R.halo = typ == 'A' and th == 0
    NE, SK, THR = NES[typ], SKS[typ], THRS[typ]
    R.csp = [] if th else [0, 3, 4] if (typ == 'A' and HONES) else [0, 1, 2, 3, 4]
    R.acc = [{i: A(4) for i in ([-1] if (typ == 'A' and p in (1, 2)) else []) + [0, 1, 2, 3]} for p in range(5)]
    R.cs = [A(4) for p in range(5)]
    T = A(4)
    R.xf = [{i: 154 + 4 * (i + 1) for i in range(-1, 4)}, {i: 216 + 4 * i if i >= 0 else 200 for i in range(-1, 4)}]
    R.wf = [232, 240, 232, 240, 248]
    wr, ex, s16, sg, t0, t1, t2 = R.wr, R.ex, R.s16, R.sg, R.t0, R.t1, R.t2
    stq = {0: A(4), 1: 18, 2: 22, 3: 180, -1: 176}
    dq = load_queue(R, typ, th)
    def D(i):
        q = QUOTA[th]; n = q[i + 1] if i + 1 < len(q) else q[len(q) - 2 + (i + 1 - len(q)) % 2]
        out = []
        for x in list(dq):
            if x[0] <= i and (x[1] <= i + 2 or i >= 16 or (len(out) < n and (x[1] <= i + LK or x[1] == 99))): out.append(x[2]); dq.remove(x)
        return out
    o = [I(f'L_{typ}{th}:')] + first_loads(R, typ, th) + [I(f's_setprio {LPRIO[th]}')]
    d0 = D(-1)
    if PI[0] == -1 and pf_mine(typ, th, 0): d0.insert(min(PFPOS + th, len(d0)), pf_load(R, typ, th, 0))
    sA_, (sB_, sC_), sS = setup_a(R, typ, th), setup_b(R, typ, th), row_stats(R)
    later = {}
    cpl = [I(f'buffer_load_dwordx4 {v(R.cv,4)}, v{R.c1}, s[{sWo}:{sWo+3}], 0 offen offset:{CPY % 8 * 128}')]
    if th == 1 and CPY < 8 and CPI[0] == -1:
        k = max(n for n, x in enumerate(sB_) if ('v', R.c2) in x.dst) + 1
        sB_ = sB_[:k] + cpl + sB_[k:]
    sC_ = keep_scc(sC_); npc = len(SBI[th])
    for k, x in enumerate(SBI[th]):
        piece = flat(sC_[k * len(sC_) // npc:(k + 1) * len(sC_) // npc])
        if x < 0: sB_ = sB_ + piece
        else: later[x] = later.get(x, []) + piece
    code = keep_scc(sA_[R.na:])
    walk = [I('s_mov_b64 exec, 0'), I(f's_branch L_P{th}w{typ}'), I(f'L_{typ}{th}r:'), I('s_mov_b64 exec, -1')]
    if NAP[0] < 99: later[NAP[0]] = later.get(NAP[0], []) + [I(f's_sleep {NAP[1]}')]
    if 0 <= WARM[th] < 99: later[WARM[th]] = later.get(WARM[th], []) + walk
    code += keep_scc(sB_ + stamp('setup')) + ([walk] if WARM[th] == -1 else []) + keep_scc(sS)
    k0, k1 = int(len(code) * W0[th] / 100), int(len(code) * W1[th] / 100)
    o += sA_[:R.na] + flat(code[:k0]) + weave(code[k0:k1], d0) + flat(code[k1:]) + stamp('late')
    for i in range(17):
        o += [waitlgkm0() if i else I('s_waitcnt lgkmcnt(0)'), waitvm(f'W{i}', f'X{i//2}', *(['rst'] if i == AT0 else ['stat'] if i == 16 else [])), I('s_barrier')] + stamp(f's{i}')
        dm = D(i)
        dm += [pf_load(R, typ, th, k) for k in range(4) if PI[k] == i and pf_mine(typ, th, k)]
        if th == 1:
            if CPY < 8 and i == CPI[0]: dm.append(cpl)
            if CPY < 8 and i == CPI[1]: dm.append([I(f'buffer_store_dwordx4 {v(R.cv,4)}, v{R.c2}, s[{sWS}:{sWS+3}], 0 offen{SC}', 'rst')])
            if AT0 <= i < AT0 + ATN:
                dm.append([I(f's_and_b32 s3, s{sC}, {ATN - 1}'), I(f's_cmp_eq_u32 s3, {i - AT0}'), I(f's_cbranch_scc0 L_{typ}a{i}'),
                           I(f'RAW buffer_atomic_add v{R.one}, v{R.at}, s[{sDbg}:{sDbg+3}], 0 offen{SC}'), I(f'L_{typ}a{i}:')])
            ld = f'buffer_load_dword v{R.p1}, v{R.L16}, s[{sDbg}:{sDbg+3}], s{sLW} offen{SC}'
            if i == CHK: dm.insert(0, [I(ld, 'chk')])
            if i == CHK + 1:
                chk = [f'v_cmp_gt_u32 vcc, 16, v{R.p1}', 's_nop 0', f's_and_b32 s{sa}, vcc_lo, s{sb}']
                g = [I(f's_cmp_eq_u32 s{sC}, 0'), I(f's_cselect_b32 s{sb}, 0xffff, 0'), waitvm('chk')] + [I(x) for x in chk]
                g += [I(f's_cbranch_scc0 L_{typ}ck'), I(f'RAW s_mov_b32 s{sc_}, {SPIN}'), I(f'L_{typ}cl:')]
                g += [I('RAW ' + x) for x in ['s_sleep 8', ld, f's_sub_u32 s{sc_}, s{sc_}, 1', 's_waitcnt vmcnt(0)', f's_cbranch_scc1 L_{typ}ck'] + chk + [f's_cbranch_scc1 L_{typ}cl']]
                later[i] = g + [I(f'L_{typ}ck:')]
            if i == STI:
                st_ = [[I(f's_add_u32 m0, s{sSD}, {ST4}'), I(f's_lshr_b32 s{sSD}, s{sSD}, 2'), I(f'buffer_load_dwordx4 v{R.Sv}, s[{sWS}:{sWS+3}], 0 offen{SC} lds', 'stat')]]
                if typ == 'A':
                    st_ += [[I(f's_add_u32 m0, s{sSD}, {SMO}'), I(f'buffer_load_dword v{R.Sv}, s[{sWS}:{sWS+3}], 0 offen{SC} lds', 'stat')],
                            [I(f's_add_u32 m0, s{sSD}, {SRO - 4}'), I(f'buffer_load_dword v{R.Sv}, s[{sWS}:{sWS+3}], 0 offen offset:4{SC} lds', 'stat')]]
                dm = st_ + dm
        if i < 16: rd = reads(R, typ, th, i)
        else:
            csr = []; rd = []
            for p in ORDER[typ]:
                if typ == 'A' and p == 2: csr.append(I(f'ds_read_b32 v{R.cs[p]}, v{t2} offset:{CSO + p*256}'))
                else: csr.append(I(f'ds_read_b128 {v(R.cs[p],4)}, v{t0} offset:{CSO + p*256}'))
            for k in range(3, -2 if R.halo else -1, -1) if typ == 'A' else range(4):
                rd.append(I(f'ds_read_b128 {v(stq[k],4)}, v{s16} offset:{ST4 + (th*64 + (k+1)*16)*16}'))
            rd += flat([waitvm(f'U{t}')] + wread(th, t) for t in range(NRD[th]))
        if th == 0:
            m = mfmas(R, typ, th, i) if i < 16 else []
            if i == 15:
                sm = [x for x in m if x.mn.startswith('v_smfmac')]; m = [x for x in m if not x.mn.startswith('v_smfmac')]
                m = m[:8] + sm + m[8:]
                m = place(m, [([I(f'v_add_f32 v{R.cs[p]}, v{R.cs[p]}, v{R.cs[p]+1}') for p in R.csp], len(m) - 4, len(m) - 1)])
            if i == 16:
                if typ == 'A' and HONES:
                    o += [I('s_mov_b32 exec_lo, 0x10001'), I('s_mov_b32 exec_hi, 0x10001'), I(f'ds_write_b128 v{t0}, {v(R.acc[1][-1],4)} offset:{CSO + 256}'),
                          I('s_mov_b64 exec, 0xffff'), I(f'ds_write_b32 v{t2}, v{R.acc[2][-1]} offset:{CSO + 512}'), I('s_mov_b64 exec, -1')]
                o += [I(f'ds_write_b32 v{t2}, v{R.cs[p]} offset:{CSO + p*256}') for p in R.csp]
                rd = csr + rd
                held = dm[D16:]; dm = dm[:D16]
            if i == 0 and I0 & 1: o += rd + place(m, [(dm, 6, len(m))]) + later.get(i, [])
            else: o += (rd + flat(dm) if i == 0 else memphase(rd, dm, LEAD[i & 1])) + m + later.get(i, [])
            if i == 16 and typ == 'B': o += [waitreg(R.cs[4], 4), I('s_barrier')]
        else:
            o += mfmas(R, typ, th, i - 1) if i else []
            if i == 16 and typ == 'B': o += [I('s_barrier')]; rd = rd + csr
            o += (flat(dm) + rd if (i == 0 and I0 & 2) else memphase(rd, dm, LEAD[2 + (i & 1)])) + later.get(i, [])
    o += [I(f's_setprio {EPRIO[th]}')] + stamp('loop')
    Q = [164, 168]; b = []
    def ffn_pair(pg, pu, so):
        g = []
        for hf in range(2):
            for i in (2*hf, 2*hf+1):
                g += corr(R.acc[pg][i], R.cs[pg], stq[i]) + corr(R.acc[pu][i], R.cs[pu], stq[i])
                g += ffn_tail(R.acc[pg][i], R.acc[pu][i], stq[i], T, R.acc[pu][2*hf] + 2*(i & 1))
            g += store_frag(R, R.acc[pu][2*hf], so + hf)
        return g
    if typ == 'B':
        stm = [172, 176]
        for i in range(2): b.append(I(f'ds_read_b128 {v(stm[i],4)}, v{t1} offset:{ST4 + (th*64 + (i+1)*16)*16}'))
        b += ffn_pair(0, 2, sST) + ffn_pair(1, 3, sST + 2)
        for i in range(4): b += corr(R.acc[4][i], R.cs[4], stq[i])
        for i in range(2):
            for r in range(4): b.append(I(f'v_permlane32_swap_b32 v{R.acc[4][i]+r}, v{R.acc[4][i+2]+r}'))
        for i in range(2): b += ffn_tail(R.acc[4][i], R.acc[4][i+2], stm[i], T, Q[0] + 2*i)
        b += store_frag(R, Q[0], sST + 4, ex)
    else:
        vm, vr, vb = [172, Q[0]], [26, Q[1]], 154
        def vrd(i):
            off = (th*64 + (i+1)*16) * 4
            return [I(f'ds_read_b128 {v(vr[i&1],4)}, v{sg} offset:{SRO + off}'), I(f'ds_read_b128 {v(vm[i&1],4)}, v{sg} offset:{SMO + off}')]
        seq = [3, 2, 1, 0, -1] if th == 0 else [3, 2, 1, 0]
        b += vrd(seq[0])
        for n, i in enumerate(seq):
            a = R.acc[2][i]; k = R.acc[1][i]
            if n + 1 < len(seq): b += vrd(seq[n + 1])
            b += corr(k, R.cs[1], stq[i]) + [pk('mul', k + r, stq[i], k + r, None, 'op_sel:[1,0]') for r in (0, 2)]
            b += [I(f'v_cvt_pk_bf16_f32 v{k+j}, v{k+2*j}, v{k+2*j+1}') for j in range(2)]
            b += [pk('fma', a + r, vm[i&1] + r, R.cs[2], a + r, 'op_sel_hi:[1,0,1] neg_lo:[1,0,0] neg_hi:[1,0,0]') for r in (0, 2)]
            b += [pk('mul', a + r, a + r, vr[i&1] + r) for r in (0, 2)]
            b += [I(f'v_cvt_pk_bf16_f32 v{vb+2*(i+1)+j}, v{a+2*j}, v{a+2*j+1}') for j in range(2)]
            if n == 0 and th == 0:
                b += [I(f'ds_write_b64 v{ex}, {v(k,2)} offset:{XBASE + 32*1024}'), I(f'ds_write_b64 v{ex}, {v(vb + 8, 2)} offset:{XBASE + 34*1024}')]
            if i >= 0:
                q = R.acc[0][i]
                b += corr(q, R.cs[0], stq[i]) + [I(f'v_cvt_pk_bf16_f32 v{k+2+j}, v{q+2*j}, v{q+2*j+1}') for j in range(2)]
            if n == BN and th == 0: b += [waitlgkm0(), I('s_barrier')]
        negc = R.acc[2][-1]
        def m16(d, a, b_, c): return I(f'v_mfma_f32_16x16x16_bf16 {v(d,4)}, {v(a,2)}, {v(b_,2)}, ' + (v(c,4) if c is not None else '0'))
        mP, mC0, mC1, t = [vm[0] + j for j in range(4)]; M = vr[0]
        msk = [I(f'v_bfe_i32 v{mP}, v{R.L}, 0, 1'),
               I(f'v_and_b32 v{t}, 14, v{R.L}'), I(f'v_lshrrev_b32 v{t0}, 2, v{sg}'), I(f'v_sub_u32 v{t}, v{t}, v{t0}'),
               I(f'v_not_b32 v{mC0}, v{t}'), I(f'v_ashrrev_i32 v{mC0}, 31, v{mC0}'),
               I(f'v_sub_u32 v{mC1}, 1, v{t}'), I(f'v_ashrrev_i32 v{mC1}, 31, v{mC1}'),
               I(f'v_xor_b32 v{t}, 0xffff, v{mP}'),
               I(f'v_and_b32 v{M+2}, v{t}, v{mC0}'), I(f'v_and_b32 v{M+3}, v{t}, v{mC1}'),
               I(f'v_xor_b32 v{M}, v{t}, v{M+2}'), I(f'v_xor_b32 v{M+1}, v{t}, v{M+3}')]
        if th == 0:
            msk = [[I(f's_cmp_eq_u32 s{sRB}, 0'), I(f's_cselect_b32 s{sa}, 0xf149f2ca, 0')]] + [I(f'v_mov_b32 v{negc+r}, s{sa}') for r in range(4)] + msk
        sm = []; k = R.acc[1]
        for i in (3, 2, 1, 0):
            sm += [m16(R.acc[0][i], k[i], k[i] + 2, None), m16(R.acc[2][i], k[i-1], k[i] + 2, negc if (i == 0 and th == 0) else None)]
        b += place(sm, [(msk, 0, 8)])
        sel = lambda d, m, a, b_: I(f'v_bitop3_b32 v{d}, v{m}, v{a}, v{b_} bitop3:0xca')
        c = R.acc[0]
        for i in (3, 2, 1, 0):
            p = R.acc[2][i]
            b += [sel(c[i], mP, c[i]+1, c[i]), sel(c[i]+1, mP, c[i]+3, c[i]+2), sel(p, mP, p+1, p), sel(p+1, mP, p+3, p+2),
                  sel(c[i], mC0, c[i], p), sel(c[i]+1, mC1, c[i]+1, p+1), I(f'v_max_f32 v{c[i]+2}, v{c[i]}, v{c[i]+1}')]
        x = [c[i] + 2 for i in range(4)]
        ke = [I(f'v_mul_f32 v{c[i]+3}, 0xbe800000, v{stq[i]+2}') for i in range(4)]
        b += [I(f'v_permlane16_swap_b32 v{x[2]}, v{x[3]}'), ke[0], I(f'v_permlane16_swap_b32 v{x[0]}, v{x[1]}'), I(f'v_max_f32 v{x[2]}, v{x[2]}, v{x[3]}'),
              I(f'v_max_f32 v{x[0]}, v{x[0]}, v{x[1]}'), ke[1], ke[2], I(f'v_permlane32_swap_b32 v{x[0]}, v{x[2]}'), I(f'v_max_f32 v{x[0]}, v{x[0]}, v{x[2]}'),
              I(f'v_mov_b32 v{x[2]}, v{x[0]}'), ke[3], I(f'v_permlane32_swap_b32 v{x[0]}, v{x[2]}'), I(f'v_mov_b32 v{x[1]}, v{x[0]}'), I(f'v_mov_b32 v{x[3]}, v{x[2]}'),
              I(f'v_permlane16_swap_b32 v{x[0]}, v{x[1]}'), I(f'v_permlane16_swap_b32 v{x[2]}, v{x[3]}')]
        for i in range(4):
            b += [pk('add', c[i], c[i], c[i] + 2, None, 'op_sel_hi:[1,0] neg_lo:[0,1] neg_hi:[0,1]'),
                  pk('mul', c[i], c[i] + 2, c[i], None, 'op_sel:[1,0]'), I(f'v_exp_f32 v{c[i]}, v{c[i]}'), I(f'v_exp_f32 v{c[i]+1}, v{c[i]+1}')]
        pv = []
        for i in range(4):
            p = R.acc[1][i]
            g = [I(f'v_cvt_pk_bf16_f32 v{c[i]}, v{c[i]}, v{c[i]}'), I(f'v_cvt_pk_bf16_f32 v{c[i]+1}, v{c[i]+1}, v{c[i]+1}'),
                 I(f'v_and_b32 v{p}, v{c[i]}, v{M}'), I(f'v_and_b32 v{p+1}, v{c[i]+1}, v{M+1}'), I(f'v_and_b32 v{p+2}, v{c[i]}, v{M+2}'), I(f'v_and_b32 v{p+3}, v{c[i]+1}, v{M+3}')]
            b += g[:2] + pv[:1] + g[2:4] + pv[1:] + g[4:]
            pv = [mfma16(R.acc[2][i], R.ones, p, None), mfma16(c[i], vb + 2*i, p, None)]
        b += pv + ffn_pair(3, 4, sST)
        for i in range(4): b.append(I(f'v_rcp_f32 v{R.acc[2][i]}, v{R.acc[2][i]}'))
        for hf in range(2):
            for i in (2*hf, 2*hf+1):
                b += [pk('mul', c[i] + r, c[i] + r, R.acc[2][i], None, 'op_sel_hi:[1,0]') for r in (0, 2)]
                b += [I(f'v_cvt_pk_bf16_f32 v{Q[hf]+2*(i&1)+j}, v{c[i]+2*j}, v{c[i]+2*j+1}') for j in range(2)]
            b += store_frag(R, Q[hf], sST + 2 + hf)
    if CUT & 1 and typ == 'A': b = [i for i in b if not (i.mn == 'v_bitop3_b32' or 'op_sel:[1,0]' in i.text)]
    if CUT & 2: b = [i for i in b if 'neg_lo:[1,0,0]' not in i.text]
    if th == 0 and held:
        b = keep_scc(b); k = len(b) // 8
        b = flat(b[:k]) + weave(b[k:4*k], held) + flat(b[4*k:])
    H = SPLIT[th]; assert NRD[0] == 0 and NE[0] == 0
    stage = [[waitvm(f'U{t}')] + wread(th, t) for t in range(NRD[th], 2)]
    for t in range(H):
        if t + 2 in range(max(NRD[th], 2), H): stage.append([waitvm(f'U{t+2}')] + wread(th, t + 2))
        thr = [I(f's_waitcnt vmcnt({THR - 1})')] if THR else []
        if t < NE[th]: stage += [[wdone(th, t)] + thr + w2_dma(R, th, t + H, 0), thr + w2_dma(R, th, t + H, 1)]
    halo = [I('s_barrier'), I(f'ds_read_b64 {v(R.acc[1][-1],2)}, v{ex} offset:{XBASE + 32*1024}'), I(f'ds_read_b64 {v(154,2)}, v{ex} offset:{XBASE + 34*1024}')] + csr if (typ == 'A' and th) else []
    if NE[th]: o += flat(stage[:BS]) + halo + flat(stage[BS:]) + stamp('u8a') + b + stamp('epi')
    else: o += halo + stamp('u8a') + b + stamp('epi') + flat(stage)
    npre = min(NES['A'][th], NES['B'][th])
    if th: o += [waitlgkm0()] + ([waitvm(f'U{H - 1 + npre}')] + flat(wread(th, t) for t in range(H, H + npre)) if npre else [])
    rest = [[I(f'buffer_load_dwordx2 {v(20 + 2*q, 2)}, v{R.a4 if q else R.xo}, s[{sX}:{sX+3}], 0 offen')] for q in range(2)]
    rest += [[wdone(th, t - H)] + w2_dma(R, th, t, h) for t in range(H + NE[th], 2 * H) for h in range(2)]; sk = min(2 * SK[th] + 2, len(rest))
    signal = [waitvm('act'), I('s_mov_b64 exec, 1'), I(f'ds_add_rtn_u32 v{t0}, v{R.L}, v{R.one} offset:{CNT + 4*th}'), waitlgkm0(),
              I(f'v_readfirstlane_b32 s{sa}, v{t0}'), I('s_mov_b64 exec, -1'), I(f's_xor_b32 s{sa}, s{sa}, 3'), I(f's_lshl_b32 s{sa}, s{sa}, 24'), I(f'v_add_u32 v{t0}, s{sa}, v{R.fs}'),
              I(f'buffer_store_dword v{R.one}, v{t0}, s[{sWS}:{sWS+3}], 0 offen{SC}'), I(f's_setprio {P2PRIO[th]}')] + stamp('flag')
    if THR0: rest = rest[:sk] + [[I(f's_waitcnt vmcnt({THR0 - 1})')] + g for g in rest[sk:]]
    o += flat(rest[:sk])
    if rest[sk:]: o += signal + flat(rest[sk:-4]) + poll_issue(th, 0) + flat(rest[max(sk, len(rest) - 4):])
    else: o += poll_issue(th, 0) + signal
    return o + [I(f's_branch L_P{th}')]

def phase2(R, th):
    L, L16, t0, t1, t2, xo, av, one = R.L, R.L16, R.t0, R.t1, R.t2, R.xo, R.av, R.one
    ra, zr, xv, wa, xo1, ra1, av2 = 18, 19, 20, [17, t1], R.a4, R.ex, R.W2d
    acc = [[24 + 16 * tt + 4 * p for p in range(4)] for tt in range(2)]
    NA, LA1 = NAS[th], LAS[th]
    af = [56 + 4 * k for k in range(NA)]; assert NA <= (8 if th == 0 else 12) and NA % 2 == 0
    H = SPLIT[th]; NT = 2 * H; P = f'L_P{th}'; W = WREG[th]
    chk = [f's_and_b32 s{sPoll}, s{sPoll}, s{sPoll+k}' for k in range(1, 2 + 2 * th)]
    def poll_check(p):
        return [waitlgkm0()] + [I(x) for x in chk] + [I(f's_cbranch_scc1 {P}g{p}'), I(f'RAW s_mov_b32 s{sc_}, {SPIN}'), I(f'{P}p{p}:')] + [I('RAW ' + x) for x in
                [f's_sleep {SLEEP}', poll_issue(th, p)[0].text, f's_sub_u32 s{sc_}, s{sc_}, 1', 's_waitcnt lgkmcnt(0)', f's_cbranch_scc1 {P}g{p}'] + chk +
                [f's_cbranch_scc0 {P}p{p}']] + [I(f'{P}g{p}:')] + stamp(f'go{p}')
    def frag(t):
        return ((t >> 2) * 2 + (t & 1), t >> 1 & 1) if CHAIN else (t >> 1, t & 1)
    cur = [None]
    def aload(n):
        p, t = divmod(n, NT); g = []
        if t == 0 and p == 1: g += poll_check(1)
        u, tt = frag(t); second = u >= H // 2; u %= H // 2
        so = p * 2 * 144 * 1024 + (u >> 1) * 4096; off = (u & 1) * 2048 + tt * 256
        if so != cur[0]: g += [I(f's_mov_b32 s{sAr}, {so}')]; cur[0] = so
        return g + [I(f'buffer_load_dwordx4 {v(af[n % NA],4)}, v{av2 if second else av}, s[{sWS}:{sWS+3}], s{sAr} offen' + (f' offset:{off}' if off else '') + SC)]
    nxt = [NA]
    def more(n):
        g = poll_issue(th, 1) if n == NT - LA1 - 4 else []
        lim = min(n + 2 + NA, 2 * NT) if n + 2 >= NT - LA1 else min(n + 2 + NA, NT)
        while nxt[0] < lim: g += aload(nxt[0]); nxt[0] += 1
        return g
    o = [I(f'{P}:')] + stamp('r2') + [I(f's_lshl_b32 s{sa}, s{sDl}, 8'), I(f'v_add_u32 v{av2}, s{sa}, v{av}'), I('s_waitcnt lgkmcnt(0)')] + poll_check(0) + flat(aload(n) for n in range(NA))
    o += [I(f's_add_u32 s{sd}, s{sLX}, {_W1}'), I(f'v_lshrrev_b32 v{t0}, 4, v{L}'), I(f'v_lshl_add_u32 v{t2}, v{t0}, 5, v{L16}'), I(f'v_and_b32 v{t2}, 0xf0, v{t2}'),
          I(f'v_lshl_add_u32 v{t2}, v{t0}, 8, v{t2}'), I(f'v_add_u32 v{wa[0]}, s{sd}, v{t2}'), I(f'v_xor_b32 v{wa[1]}, 128, v{wa[0]}'),
          I(f'v_and_b32 v{t0}, 7, v0'), I(f'v_lshrrev_b32 v{t2}, 4, v0'), I(f'v_lshl_add_u32 v{t0}, v{t0}, 1, v{t2}'), I(f'v_and_b32 v{t0}, 15, v{t0}'), I(f'v_lshlrev_b32 v{ra}, 4, v{t0}'),
          I(f'v_and_b32 v{t0}, 3, v0'), I(f'v_lshl_add_u32 v{ra}, v{t0}, 8, v{ra}'), I(f'v_bfe_u32 v{t2}, v0, 2, 2'), I(f'v_lshl_add_u32 v{ra}, v{t2}, 13, v{ra}'),
          I(f'v_add_u32 v{ra}, {_W1 + th * 32768}, v{ra}'),
          I(f's_lshl_b32 s{sa}, s{sC}, 8'), I(f'v_lshl_add_u32 v{ra1}, v{t2}, 13, s{sa}'), I(f'v_lshl_add_u32 v{ra1}, v{R.gp}, 6, v{ra1}'), I(f'v_lshl_add_u32 v{ra1}, v{t0}, 4, v{ra1}'),
          I(f'v_mov_b32 v{zr}, 0'), I(f's_mov_b32 s{sL2E}, {LOG2E | 0x80000000:#x}')]
    def slab_write(p, tt):
        if p == 1:
            return [I(f'ds_write_addtid_b32 v{acc[tt][q] + r} offset:{8192*(4*tt + q) + 4096*tt + 256*r}') for q in range(4) for r in range(4)]
        return [I(f'ds_write_b128 v{wa[q & 1]}, {v(acc[tt][q], 4)} offset:{8192*(4*tt + q)}') for q in range(4)]
    Pq = W[0] + W[1]; X = 12
    def fin_read(p):
        return [I(f'ds_read_b128 {v(Pq[k], 4)}, v{ra1 if p else ra} offset:{(XBASE + th * 36864 if p else 0) + k*1024}') for k in (0, 1, 2, 3, 6, 7, 4, 5)]
    def fin_x(p):
        return flat([I(f'v_lshlrev_b32 v{X+2*d}, 16, v{xv+2*p+d}'), I(f'v_and_b32 v{X+2*d+1}, 0xffff0000, v{xv+2*p+d}')] for d in range(2))
    def fin_math(p):
        f = Pq[0]; T = Pq[1]; pr = (0, 2); g = []
        for a, b in ((0, 1), (2, 3), (6, 7), (0, 2), (0, 6)): g += [pk('add', Pq[a] + r, Pq[a] + r, Pq[b] + r) for r in pr]
        g += [I(f'v_pk_mul_f32 {v(T+r,2)}, {v(f+r,2)}, s[{sL2E}:{sL2E+1}] op_sel_hi:[1,0]') for r in pr]
        g += [I(f'v_exp_f32 v{T+r}, v{T+r}') for r in range(4)]
        g += [pk('add', Pq[4] + r, Pq[4] + r, Pq[5] + r) for r in pr]
        g += [I(f'v_pk_add_f32 {v(T+r,2)}, {v(T+r,2)}, 1.0 op_sel_hi:[1,0]') for r in pr]
        g += [I(f'v_rcp_f32 v{T+r}, v{T+r}') for r in range(4)]
        g += [pk('mul', f + r, f + r, Pq[4] + r) for r in pr]
        g += [pk('fma', X + r, f + r, T + r, X + r) for r in pr]
        g += [I(f'v_cvt_pk_bf16_f32 v{xv + 2*p + r//2}, v{X+r}, v{X+r+1}') for r in pr]
        return g + [I(f'buffer_store_dwordx2 {v(xv + 2*p, 2)}, v{xo1 if p else xo}, s[{sOut}:{sOut+3}], 0 offen' + OUTSC[p])]
    def unpack(g):
        out = []
        for i in g:
            if not i.mn.startswith('v_pk_'): out.append(i); continue
            op = i.mn[5:8]
            for h in range(2):
                ops = [f'v{min(regs(x))[1] + h}' if x.startswith('v') else (f's{min(regs(x))[1]}' if x.startswith('s') else x) for x in i.ops[:4 if op == 'fma' else 3]]
                if op != 'fma': ops = [ops[0], ops[2], ops[1]]
                out.append(I(f'v_{op}_f32 ' + ', '.join(ops)))
        return out
    mid = fin_x(0) + unpack(fin_math(0)); km = (len(mid) + NM - 1) // NM
    late = list(range(H + min(NES['A'][th], NES['B'][th]), NT))
    for n in range(0, 2 * NT, 2):
        p, t = divmod(n, NT); i = t // 2
        o += stamp(f'k{n}')
        if th == 1 and n == PSW: o += [I('s_setprio 0')]
        m = []
        for q in range(4):
            for j, k in enumerate((1, 0) if (SNK and q & 1) else (0, 1)):
                u, tt = frag(t + k); ab = [W[u][q], af[(n + k) % NA]][::-1 if p else 1]
                fresh = (t < 4 and j == 0) if CHAIN else u == 0
                m.append(mfma16(acc[tt][q], ab[0], ab[1], None if fresh else acc[tt][q]))
        fill = []
        if p == 1 and i > RK[th]: fill = mid[:km]; del mid[:km]
        if CHAIN and t == NT - 2:
            if p: o += [I(f's_add_u32 m0, s{sLX}, {XBASE}')]
            o += place(m[:3], [(fill, 0, 3)] if fill else []) + place(m[3:], [(slab_write(p, 0), 0, 5)])
        else: o += place(m, [(fill, 0, 8)] if fill else [])
        o += more(n)
        if p == 0:
            for _ in range(3):
                if late: o += wread(th, late.pop(0))
        cr = f'ds_read_b32 v{t0}, v{zr} offset:{CNT + 8}'
        if p == 1 and i == RK[th] - 1: o += [I(cr)]
        if p == 1 and i == RK[th]:
            ck = [f'v_readfirstlane_b32 s{sa}, v{t0}', 's_nop 0', f's_cmp_ge_u32 s{sa}, 8']
            o += [I(x) for x in ck] + [I(f's_cbranch_scc1 {P}v'), I(f'{P}u:')] + [I('RAW ' + x) for x in ['s_sleep 1', cr, 's_waitcnt lgkmcnt(0)'] + ck + [f's_cbranch_scc0 {P}u']]
            o += [I(f'{P}v:')] + fin_read(0)
        if t == NT - 2:
            if p: o += stamp('mm')
            if not CHAIN: o += ([I(f's_add_u32 m0, s{sLX}, {XBASE}'), I('s_nop 0')] if p else []) + slab_write(p, 0)
            o += slab_write(p, 1)
            if p == 0: o += [I('s_mov_b64 exec, 1'), I(f'ds_add_u32 v{L}, v{one} offset:{CNT + 8}'), I('s_mov_b64 exec, -1')]
    assert not mid and not late and RK[th] >= 1
    o += fin_x(1) + [I('s_waitcnt lgkmcnt(0)'), I('s_barrier')] + stamp('fin') + fin_read(1) + fin_math(1)
    if STAMP and PROBE >= 0:
        o += [I('s_waitcnt vmcnt(0)')] + stamp('end') + [I('s_memrealtime s[4:5]'), I('s_waitcnt lgkmcnt(0)'), I(f's_cmp_eq_u32 s2, {PROBE}'), I(f's_cbranch_scc0 {P}z'),
              I('s_sub_u32 s6, s72, s70'), I('s_min_u32 s6, s6, 5000'), I('s_lshl_b32 s6, s6, 3'), I(f'{P}y:'), I('s_memrealtime s[8:9]'), I('s_waitcnt lgkmcnt(0)'),
              I('s_sub_u32 s7, s8, s4'), I('s_cmp_lt_u32 s7, s6'), I(f's_cbranch_scc1 {P}y'), I(f'{P}z:')]
    elif STAMP:
        o += [I('s_waitcnt vmcnt(0)')] + stamp('end') + [I('s_waitcnt lgkmcnt(0)'), I(f's_lshl3_add_u32 s{sa}, s2, s{sW}'), I(f's_lshl_b32 s{sa}, s{sa}, 7'),
              I(f's_add_u32 s{sa}, s{sa}, {STAMP_OFF:#x}'), I(f'v_mov_b32 v{t0}, s{sa}'), I(f's_sub_u32 s{sWS}, s{sWS}, {WSO << 20}'), I(f's_subb_u32 s{sWS+1}, s{sWS+1}, 0')]
        for k in range(16):
            o += [I(f'v_mov_b32 v{t1}, s{70+2*k}'), I(f'global_store_dword v{t0}, v{t1}, s[{sWS}:{sWS+1}] offset:{4*k}')]
    return o + [I('s_endpgm')]

def stubs(st, name):
    sz = iter(sizes([i.text for i in st if i.kind != 'label']))
    out = []; off = 0; nxt = 4096; k = 0; bars = 0
    for i in st:
        if i.kind != 'label':
            if off >= nxt:
                out += [I(f'{name}w{k}:'), I(f's_cbranch_execz {name}w{k+1}'), I('s_nop 0')]; k += 1; off += 8
                nxt = (off // 4096 + 1) * 4096
            if i.mn == 's_barrier': bars += 1
            if bars >= 17: nxt = min(nxt, (off // WSTR + 1) * WSTR)
            off += next(sz)
        out.append(i)
    assert off <= 12288
    for i in out:
        if i.text == f's_cbranch_execz {name}w{k}': i.text = f's_cbranch_execz {name}r'
    return out

DOC = """; One persistent kernel, 256 workgroups (one per CU) x 8 waves; written by gen/gen15.py (hand-written generator).
;   16x16x32 MFMAs; x and weight slabs stream through LDS rings (LDS-DMA, transposing reads).  LayerNorm is folded in
;   and publishes them; column sums come from sparse MFMAs with ones.  Type A blocks (4 heads + 64 FFN columns) finish
"""

def main():
    assert not EXM & EXB
    assert KP[0] == 0 and sorted(KP) == list(range(8))
    assert CHK + 1 < 12 and CPI[1] < AT0 and STI > CHK + 1 and min(PI[1:]) >= 0 and all(x < 11 or x == 99 for x in PI)
    R, o = common()
    txt = text(finalize(o))
    pre = [Ins(i.text, i.tag) for i in o if i.kind == 'vmem']
    for typ in 'AB':
        for th in range(2):
            st = align8(finalize(pre + stream(R, typ, th))[len(pre):])
            txt += f'; ---- phase 1, type {typ}, token half {th} ----\n.p2align 12\n' + text(stubs(st, f'L_{typ}{th}') if WARM[th] < 99 else st)
    for th in range(2):
        txt += f'; ---- phase 2, waves {4*th}-{4*th+3} ----\n.p2align 12\n' + (f'L_P{th}wA:\n  s_branch L_A{th}w0\nL_P{th}wB:\n  s_branch L_B{th}w0\n' if WARM[th] < 99 else '') + text(align8(finalize(phase2(R, th))))
    hdr = open('cdna_kernels/' + NAME + '.s.ref').read().split('; Override launch')[0]
    n = NAME + '_kernel'
    s_ = hdr + DOC + '; @launch grid=(256,1,1) block=(512,1,1) lds=163840\n.amdgcn_target "amdgcn-amd-amdhsa--gfx950"\n.text\n'
    s_ += f'.globl {n}\n.p2align 8\n.type {n},@function\n{n}:\n{txt}L_end:\n.fill (66048 - (L_end - {n})) / 4, 4, 0xbf800000\n'
    s_ += f'''.section .rodata,"a"
.p2align 6
.amdhsa_kernel {n}
  .amdhsa_next_free_vgpr 256
  .amdhsa_next_free_sgpr 102
  .amdhsa_accum_offset 256
  .amdhsa_group_segment_fixed_size 0
  .amdhsa_kernarg_size 80
  .amdhsa_user_sgpr_count 2
  .amdhsa_user_sgpr_kernarg_segment_ptr 1
  .amdhsa_system_sgpr_workgroup_id_x 1
  .amdhsa_float_denorm_mode_32 3
.end_amdhsa_kernel
'''
    open(opt('-o', 'cdna_kernels/' + NAME + '.s'), 'w').write(s_)
main()
```
